```python
import torch

def _softmax(x, axis=-1):
    return torch.softmax(x, dim=axis)

def _gelu(x):
    return torch.nn.functional.gelu(x, approximate='tanh')

def _silu(x):
    return torch.nn.functional.silu(x)

def _sigmoid(x):
    return torch.sigmoid(x)

def _layernorm(x, axis=-1, eps=1e-05):
    m = x.mean(dim=axis, keepdim=True)
    v = x.var(dim=axis, keepdim=True, unbiased=False)
    return (x - m) / torch.sqrt(v + eps)

def _scatter_add(tgt, idx, src, axis=0):
    return tgt.clone().index_add_(axis, idx, src)

def _segment_sum(src, seg, n):
    out = torch.zeros((n,) + src.shape[1:], dtype=src.dtype)
    return out.index_add_(0, seg, src)

def _pad(x, pw):
    flat = tuple((v for pair in reversed(pw) for v in pair))
    return torch.nn.functional.pad(x, flat)
kernel_name = 'adaLN_cond__sliding_local_dilated__swiglu_ffn__prompt'

def setup_inputs():

    _w = lambda a: (lambda t: t.to(torch.bfloat16) if t.is_floating_point() else t)(torch.as_tensor(a))

    def _A_setup():
        B, S, D = (1, 2048, 640)
        return {'x': _w((lambda *s: torch.randn(*s, dtype=torch.bfloat16) * 0.05)(B, S, D)), 'wqkv': _w((lambda *s: torch.randn(*s, dtype=torch.bfloat16) * 0.05)(D, 3 * D)), 'wo': _w((lambda *s: torch.randn(*s, dtype=torch.bfloat16) * 0.05)(D, D))}
    _A_in = _A_setup()

    def _B_setup():
        B, S, D, F = (1, 2048, 640, 1536)
        return {'x': _w((lambda *s: torch.randn(*s, dtype=torch.bfloat16) * 0.05)(B, S, D)), 'w_gate': _w((lambda *s: torch.randn(*s, dtype=torch.bfloat16) * 0.05)(D, F)), 'w_up': _w((lambda *s: torch.randn(*s, dtype=torch.bfloat16) * 0.05)(D, F)), 'w_down': _w((lambda *s: torch.randn(*s, dtype=torch.bfloat16) * 0.05)(F, D))}
    _B_in = _B_setup()
    return {'A_x': _A_in['x'], 'A_wqkv': _A_in['wqkv'], 'A_wo': _A_in['wo'], 'B_x': _B_in['x'], 'B_w_gate': _B_in['w_gate'], 'B_w_up': _B_in['w_up'], 'B_w_down': _B_in['w_down'], 'c': _w((lambda *s: torch.randn(*s, dtype=torch.bfloat16) * 0.1)(1, 640) * 8.0), 'w_mod': _w((lambda *s: torch.randn(*s, dtype=torch.bfloat16) * 0.1)(640, 6 * 640) * 640 ** (-0.5) * 8.0)}

def reference(A_x, A_wqkv, A_wo, B_x, B_w_gate, B_w_up, B_w_down, c, w_mod):

    def _A_ref(x, wqkv, wo):
        B, S, D = x.shape
        H = 32
        Dh = D // H
        W, dil = (8, 2)
        qkv = (lambda x, *d: x.permute(*d))((x @ wqkv).reshape(B, S, 3, H, Dh), 2, 0, 3, 1, 4)
        q, k, v = (qkv[0], qkv[1], qkv[2])
        scale = Dh ** (-0.5)
        pos = torch.arange(S)
        off = torch.arange(W) * dil
        idx = pos[:, None] - off[None, :]
        mask = idx >= 0
        idx_c = torch.where(mask, idx, 0).reshape(-1)
        kg = k[:, :, idx_c, :].reshape(B, H, S, W, Dh)
        vg = v[:, :, idx_c, :].reshape(B, H, S, W, Dh)
        logits = torch.einsum('bhsd,bhswd->bhsw', q, kg) * scale
        logits = torch.where(mask[None, None, :, :], logits, -1000000000.0)
        attn = _softmax(logits, axis=-1)
        o = torch.einsum('bhsw,bhswd->bhsd', attn, vg)
        return (lambda x, *d: x.permute(*d))(o, 0, 2, 1, 3).reshape(B, S, D) @ wo

    def _B_ref(x, w_gate, w_up, w_down):
        g = _silu(x @ w_gate)
        u = x @ w_up
        return g * u @ w_down
    x = A_x
    mod = (_silu(c) @ w_mod).reshape(c.shape[0], 6, 1, -1)
    sa, ca, ga, sb, cb, gb = (mod[:, 0].clone(), mod[:, 1].clone(), mod[:, 2].clone(), mod[:, 3].clone(), mod[:, 4].clone(), mod[:, 5].clone())
    h = _layernorm(x, axis=-1) * (1 + ca) + sa
    x = x + ga * _A_ref(h, A_wqkv, A_wo)
    h = _layernorm(x, axis=-1) * (1 + cb) + sb
    x = x + gb * _B_ref(h, B_w_gate, B_w_up, B_w_down)
    return x
```

```python
class Asm:
    def __init__(self):
        self.launch = []
        self.lines = []
        self.desc = []
        self._lab = 0
    def __call__(self, s):
        for l in s.split("\n"):
            l = l.strip()
            if l:
                self.lines.append("  " + l if not l.endswith(":") else l)
    def c(self, s):
        self.lines.append("  ; " + s)
    def label(self, base="L"):
        self._lab += 1
        return f"{base}_{self._lab}"
    def begin(self, name, grid, block, lds=0):
        self.launch.append(f"; @launch kernel={name} grid=({grid},1,1) block=({block},1,1) lds={lds}")
        self.lines += [f".globl {name}", ".p2align 8", f".type {name},@function", f"{name}:"]
    def relaunch(self, name, grid, block, lds=0):
        self.launch.append(f"; @launch kernel={name} grid=({grid},1,1) block=({block},1,1) lds={lds}")
    def end(self, name, vgpr=128, sgpr=96, agpr=0):
        acc = (vgpr + 3) // 4 * 4
        nfv = acc + agpr if agpr else vgpr
        self.desc.append(f""".p2align 6
.amdhsa_kernel {name}
  .amdhsa_next_free_vgpr {nfv}
  .amdhsa_next_free_sgpr {sgpr}
  .amdhsa_accum_offset {acc}
  .amdhsa_group_segment_fixed_size 0
  .amdhsa_kernarg_size 96
  .amdhsa_user_sgpr_count 2
  .amdhsa_user_sgpr_kernarg_segment_ptr 1
  .amdhsa_system_sgpr_workgroup_id_x 1
  .amdhsa_float_denorm_mode_32 3
.end_amdhsa_kernel""")
    def text(self, header=""):
        import hazard
        self.lines = hazard.fix(self.lines, verbose=True)
        return (header + "\n".join(self.launch) + "\n" + '.amdgcn_target "amdgcn-amd-amdhsa--gfx950"\n.text\n'
                + "\n".join(self.lines) + '\n.section .rodata,"a"\n' + "\n".join(self.desc) + "\n")
```

```python
import sys, struct
from asmlib import Asm

def f2u(x): return struct.unpack("<I", struct.pack("<f", x))[0]
def vr(i, n): return f"v[{i}:{i+n-1}]" if n > 1 else f"v{i}"
def ar(i, n): return f"a[{i}:{i+n-1}]" if n > 1 else f"a{i}"
def sr(i, n): return f"s[{i}:{i+n-1}]" if n > 1 else f"s{i}"

MB = 1 << 20
MODP = 0x0000000
MODF = 0x0010000
WXP  = 0x0020000
ST   = 0x0040000
FLG  = 0x0080000
H1P  = 0x0100000
WQP  = 0x0400000
WOP  = 0x0700000
WGP  = 0x0800000
WDP  = 0x0C00000
OP   = 0x0E00000
X1P  = 0x1100000
ACTP = 0x1400000
STAMP= 0x1B00000
WS_USED = 0x1C00000
OOB = 0x40000000
LOG2E = 1.4426950408889634

def srd(a, d, lo, hi, nbytes):
    a(f"s_mov_b32 s{d}, s{lo}\ns_mov_b32 s{d+1}, s{hi}\ns_mov_b32 s{d+2}, {nbytes}\ns_mov_b32 s{d+3}, 0x20000")

def udiv_v(a, dst, src, d, tmp_s, maxv):
    for sh in range(10, 24):
        m = -(-(1 << sh) // d)
        if all((x * m) >> sh == x // d for x in range(maxv)) and m * maxv < (1 << 32) and m < (1 << 24):
            break
    else:
        raise ValueError
    a(f"v_mul_u32_u24 v{dst}, {m}, v{src}")
    a(f"v_lshrrev_b32 v{dst}, {sh}, v{dst}")

def udiv_s(a, dst, src, d, maxv):
    for sh in range(8, 24):
        m = -(-(1 << sh) // d)
        if all((x * m) >> sh == x // d for x in range(maxv)):
            break
    else:
        raise ValueError
    a(f"s_mul_i32 s{dst}, s{src}, {m}")
    a(f"s_lshr_b32 s{dst}, s{dst}, {sh}")

def rnd_bf16(a, dst, src):
    a(f"v_cvt_pk_bf16_f32 v{dst}, v{src}, v{src}")
    a(f"v_and_b32 v{dst}, 0xffff0000, v{dst}")

def k0a(a):
    name = "k0a_kernel"
    a.begin(name, 256, 256, lds=1024)
    a(f"""
    s_load_dwordx4 s[4:7], s[0:1], 56
    s_load_dwordx2 s[8:9], s[0:1], 88
    s_cmp_ge_u32 s2, 240
    s_cbranch_scc1 K0A_END
    """)
    udiv_s(a, 20, 2, 60, 256)
    a(f"""
    s_mul_i32 s21, s20, 60
    s_sub_u32 s21, s2, s21                     ; cg
    s_mul_i32 s22, s20, {160*7680}
    s_lshl_b32 s23, s21, 7
    s_add_u32 s22, s22, s23
    s_mul_i32 s24, s20, 320                    ; c soffset
    v_lshrrev_b32 v1, 3, v0                    ; r0
    v_and_b32 v2, 7, v0
    v_mul_u32_u24 v3, 7680, v1
    v_lshl_add_u32 v3, v2, 4, v3               ; w voffset
    v_lshlrev_b32 v4, 1, v1                    ; c voffset
    s_waitcnt lgkmcnt(0)
    """)
    srd(a, 12, 4, 5, 1280)
    srd(a, 16, 6, 7, 640*3840*2)
    srd(a, 28, 8, 9, WS_USED)
    for i in range(5):
        a(f"buffer_load_ushort v{8+i}, v4, s[12:15], s24 offen offset:{64*i}")
    for i in range(5):
        a(f"buffer_load_dwordx4 {vr(16+4*i,4)}, v3, s[16:19], s22 offen nt")
        if i < 4: a(f"s_add_u32 s22, s22, {32*7680}")
    a("s_waitcnt vmcnt(5)")
    for i in range(5): a(f"v_lshlrev_b32 v{8+i}, 16, v{8+i}")
    for i in range(5): a(f"v_mul_f32 v{40+i}, {f2u(-LOG2E)}, v{8+i}")
    for i in range(5): a(f"v_exp_f32 v{40+i}, v{40+i}")
    a("s_nop 0")
    for i in range(5): a(f"v_add_f32 v{40+i}, 1.0, v{40+i}")
    for i in range(5): a(f"v_rcp_f32 v{40+i}, v{40+i}")
    a("s_nop 0")
    for i in range(5): a(f"v_mul_f32 v{8+i}, v{8+i}, v{40+i}")
    for i in range(5): rnd_bf16(a, 8+i, 8+i)
    for i in range(5):
        a(f"s_waitcnt vmcnt({4-i})")
        for d in range(4):
            a(f"v_lshlrev_b32 v40, 16, v{16+4*i+d}")
            a(f"v_and_b32 v41, 0xffff0000, v{16+4*i+d}")
            if i == 0:
                a(f"v_mul_f32 v{48+2*d}, v40, v8")
                a(f"v_mul_f32 v{49+2*d}, v41, v8")
            else:
                a(f"v_fmac_f32 v{48+2*d}, v40, v{8+i}")
                a(f"v_fmac_f32 v{49+2*d}, v41, v{8+i}")
    a("s_nop 1")
    for d in range(4): a(f"v_permlane32_swap_b32 v{48+d}, v{52+d}")
    for d in range(4): a(f"v_add_f32 v{48+d}, v{48+d}, v{52+d}")
    a("s_nop 1")
    for d in range(2): a(f"v_permlane16_swap_b32 v{48+d}, v{50+d}")
    for d in range(2): a(f"v_add_f32 v{48+d}, v{48+d}, v{50+d}")
    a("s_nop 1")
    for d in range(2): a(f"v_add_f32_dpp v{48+d}, v{48+d}, v{48+d} row_ror:8 row_mask:0xf bank_mask:0xf")
    a(f"""
    v_and_b32 v5, 63, v0
    v_lshrrev_b32 v6, 4, v5
    v_lshlrev_b32 v6, 3, v6                    ; *2 cols *4B
    v_lshl_add_u32 v6, v2, 5, v6               ; + c*32B
    v_lshrrev_b32 v7, 6, v0
    v_lshl_add_u32 v6, v7, 8, v6               ; + wave*256
    v_and_b32 v5, 8, v0
    v_cmp_eq_u32 vcc, 0, v5
    s_and_saveexec_b64 s[34:35], vcc
    ds_write_b64 v6, v[48:49]
    s_mov_b64 exec, s[34:35]
    s_waitcnt lgkmcnt(0)
    s_barrier
    v_cmp_gt_u32 vcc, 64, v0
    s_and_saveexec_b64 s[34:35], vcc
    s_cbranch_execz K0A_END
    v_lshlrev_b32 v6, 2, v0
    ds_read_b32 v8, v6
    ds_read_b32 v9, v6 offset:256
    ds_read_b32 v10, v6 offset:512
    ds_read_b32 v11, v6 offset:768
    s_mul_i32 s25, s20, {3840*4}
    s_lshl_b32 s26, s21, 8
    s_add_u32 s25, s25, s26
    s_add_u32 s25, s25, {MODP}
    s_waitcnt lgkmcnt(0)
    v_add_f32 v8, v8, v9
    v_add_f32 v10, v10, v11
    v_add_f32 v8, v8, v10
    buffer_store_dword v8, v6, s[28:31], s25 offen
    K0A_END:
    s_endpgm
    """)
    a.end(name, 64, 48)

L_STG = 0
L_A1 = 45056
L_S1 = L_A1 + 2560
L_A2 = L_S1 + 2560
L_S2 = L_A2 + 1024
L_RED = L_S2 + 1024
L_UT = L_RED + 256
K0B_LDS = L_UT + 2048

def k0b(a):
    name = "k0b_kernel"
    a.begin(name, 256, 256, lds=K0B_LDS)
    a(f"""
    s_load_dwordx16 s[36:51], s[0:1], 0
    s_load_dwordx8 s[52:59], s[0:1], 64
    s_cmp_ge_u32 s2, 256
    s_cbranch_scc1 K0B_END
    v_lshrrev_b32 v1, 6, v0
    v_and_b32 v2, 63, v0                       ; lane
    v_readfirstlane_b32 s3, v1                 ; wave
    v_and_b32 v3, 7, v2                        ; l&7
    v_lshrrev_b32 v4, 3, v2                    ; l>>3
    s_waitcnt lgkmcnt(0)
    """)
    srd(a, 4, 36, 37, 2048*1280)
    srd(a, 8, 58, 59, WS_USED)
    a(f"""
    s_and_b32 s20, s2, 127
    s_lshl_b32 s20, s20, 4                     ; 2*8*(b&127)
    s_lshr_b32 s21, s2, 7
    s_add_u32 s20, s20, s21
    s_mul_i32 s20, s20, 1280
    s_lshl_b32 s21, s3, 7
    s_add_u32 s20, s20, s21                    ; + w*128
    v_mul_u32_u24 v5, 2560, v3
    v_lshl_add_u32 v5, v4, 4, v5
    buffer_load_dwordx4 v[16:19], v5, s[4:7], s20 offen
    buffer_load_dwordx4 v[20:23], v5, s[4:7], s20 offen offset:512
    v_mov_b32 v24, 0
    v_mov_b32 v25, 0
    v_mov_b32 v26, 0
    v_mov_b32 v27, 0
    s_cmp_ge_u32 s3, 2
    s_cbranch_scc1 K0B_NO3
    buffer_load_dwordx4 v[24:27], v5, s[4:7], s20 offen offset:1024
    K0B_NO3:
    """)
    a(f"""
    v_lshlrev_b32 v6, 2, v0
    s_mov_b32 s22, {MODP}
    """)
    for kq in range(4):
        for i in range(5):
            if i < 4:
                a(f"buffer_load_dword v{64+kq*7+i}, v6, s[8:11], s22 offen offset:{1024*i}")
            else:
                a(f"s_add_u32 s23, s22, 4096")
                a(f"buffer_load_dword v{64+kq*7+i}, v6, s[8:11], s23 offen")
        a(f"s_add_u32 s22, s22, {3840*4}")
    udiv_s(a, 24, 2, 48, 256)
    a(f"""
    s_mul_i32 s25, s24, 48
    s_sub_u32 s25, s2, s25
    s_mul_i32 s26, s24, 640
    s_add_u32 s27, s26, {1920*4}
    s_cmp_lt_u32 s2, 240
    s_cbranch_scc1 K0B_X1
    s_sub_u32 s26, s2, 240
    s_mul_i32 s27, s26, 320
    s_add_u32 s27, s27, {1280*4}
    s_cmp_lt_u32 s26, 8
    s_cselect_b32 s26, 0, {(3200-1280-640)*4}
    s_add_u32 s27, s27, s26
    K0B_X1:
    v_add_u32 v7, s27, v6
    s_mov_b32 s22, {MODP}
    """)
    for kq in range(4):
        a(f"buffer_load_dword v{64+kq*7+5}, v7, s[8:11], s22 offen")
        a(f"buffer_load_dword v{64+kq*7+6}, v7, s[8:11], s22 offen offset:2560")
        if kq < 3: a(f"s_add_u32 s22, s22, {3840*4}")
    a(f"""
    s_mul_i32 s28, s3, 11264
    s_cmp_ge_u32 s2, 240
    s_cbranch_scc1 K0B_NODMA
    """)
    a(f"""
    s_cmp_ge_u32 s25, 24
    s_cselect_b32 s12, s46, s44
    s_cselect_b32 s13, s47, s45
    s_cselect_b32 s29, 24, 0
    s_cselect_b32 s60, 1, 0                    ; matrix
    s_mov_b32 s14, {640*1536*2}
    s_mov_b32 s15, 0x20000
    s_sub_u32 s29, s25, s29
    s_mul_i32 s30, s24, 20
    s_mul_i32 s31, s3, 5
    s_add_u32 s30, s30, s31
    s_mul_i32 s31, s30, {8*3072}
    s_lshl_b32 s32, s29, 7
    s_add_u32 s31, s31, s32
    v_mul_u32_u24 v8, 3072, v4
    v_lshl_add_u32 v8, v3, 4, v8
    s_cmp_ge_u32 s2, 192
    s_cbranch_scc1 K0B_NOGU
    """)
    for u in range(5):
        a(f"s_add_u32 m0, s28, {u*1024}")
        a(f"buffer_load_dwordx4 v8, s[12:15], s31 offen nt lds")
        a(f"s_add_u32 s31, s31, {8*3072}")
    a("K0B_NOGU:")
    a(f"""
    s_lshl_b32 s33, s2, 2
    s_add_u32 s33, s33, s3
    s_cmp_lt_u32 s2, 120
    s_cbranch_scc1 K0B_JQ
    s_cmp_lt_u32 s2, 160
    s_cbranch_scc1 K0B_JO
    """)
    def dst80(stride_j, base):
        udiv_v(a, 12, 10, 80, None, 640)
        a(f"""
        v_mul_u32_u24 v13, 80, v12
        v_sub_u32 v13, v10, v13                ; e
        v_mul_u32_u24 v11, {stride_j}, v12
        v_lshrrev_b32 v14, 5, v13
        v_lshlrev_b32 v14, 11, v14             ; (e>>5)*2048
        v_add_u32 v11, v11, v14
        v_bfe_u32 v14, v13, 2, 1
        v_lshlrev_b32 v14, 10, v14             ; ((e>>2)&1)*1024
        v_bfe_u32 v15, v13, 3, 2
        v_lshl_add_u32 v14, v15, 6, v14        ; + ((e>>3)&3)*64
        v_and_b32 v15, 3, v13
        v_lshl_add_u32 v14, v15, 4, v14        ; + (e&3)*16
        v_and_b32 v15, 15, v13
        v_lshlrev_b32 v15, 4, v15              ; tile 4: (e-64)*16
        v_cmp_gt_u32 vcc, 64, v13
        s_nop 1
        v_cndmask_b32 v14, v15, v14, vcc
        v_add_u32 v11, v11, v14
        v_add_u32 v11, {base}, v11
        v_mov_b32 v12, 256
        """)
    a(f"""
    s_sub_u32 s33, s33, 640
    s_lshr_b32 s34, s33, 5
    s_and_b32 s35, s33, 31
    s_mul_i32 s35, s35, 6
    """)
    srd(a, 16, 48, 49, 1536*640*2)
    a(f"""
    s_mul_i32 s31, s35, {8*1280}
    s_lshl_b32 s32, s34, 7
    s_add_u32 s31, s31, s32
    v_mul_u32_u24 v9, 1280, v4
    v_lshl_add_u32 v9, v3, 4, v9
    """)
    for u in range(6):
        a(f"s_add_u32 m0, s28, {(5+u)*1024}")
        a("s_nop 0")
        a(f"buffer_load_dwordx4 v9, s[16:19], s31 offen nt lds")
        a(f"s_add_u32 s31, s31, {8*1280}")
    a(f"s_lshl_b32 s32, s34, 6\nv_add_u32 v10, s32, v2")
    dst80(245760, WDP)
    a(f"s_mov_b32 s61, 6\ns_mov_b32 s62, 5120\ns_branch K0B_JDONE")
    a(f"""
    K0B_JO:
    s_sub_u32 s33, s33, 480
    s_lshr_b32 s34, s33, 4
    s_and_b32 s35, s33, 15                     ; jj
    """)
    srd(a, 16, 40, 41, 640*640*2)
    a(f"""
    s_mul_i32 s31, s35, {40*1280}
    s_lshl_b32 s32, s34, 7
    s_add_u32 s31, s31, s32
    s_mul_i32 s35, s35, 5
    v_and_b32 v9, 3, v4
    v_lshrrev_b32 v10, 2, v4
    v_lshl_add_u32 v9, v10, 4, v9
    v_mul_u32_u24 v9, 1280, v9
    v_lshl_add_u32 v9, v3, 4, v9
    """)
    for u in range(4):
        a(f"s_add_u32 m0, s28, {(5+u)*1024}")
        a("s_nop 0")
        a(f"buffer_load_dwordx4 v9, s[16:19], s31 offen nt lds")
        a(f"s_add_u32 s31, s31, {4*1280}")
    a(f"""
    s_add_u32 s31, s31, {16*1280}
    v_mul_u32_u24 v9, 1280, v4
    v_lshl_add_u32 v9, v3, 4, v9
    s_add_u32 m0, s28, {9*1024}
    s_nop 0
    buffer_load_dwordx4 v9, s[16:19], s31 offen nt lds
    s_lshl_b32 s32, s34, 6
    v_add_u32 v10, s32, v2
    """)
    dst80(102400, WOP)
    a(f"s_mov_b32 s61, 5\ns_mov_b32 s62, 5120\ns_branch K0B_JDONE")
    a(f"""
    K0B_JQ:
    s_lshr_b32 s34, s33, 4
    s_and_b32 s35, s33, 15
    s_mul_i32 s35, s35, 5
    """)
    srd(a, 16, 38, 39, 640*1920*2)
    a(f"""
    s_mul_i32 s31, s35, {8*3840}
    s_lshl_b32 s32, s34, 7
    s_add_u32 s31, s31, s32
    v_mul_u32_u24 v9, 3840, v4
    v_lshl_add_u32 v9, v3, 4, v9
    """)
    for u in range(5):
        a(f"s_add_u32 m0, s28, {(5+u)*1024}")
        a("s_nop 0")
        a(f"buffer_load_dwordx4 v9, s[16:19], s31 offen nt lds")
        a(f"s_add_u32 s31, s31, {8*3840}")
    udiv_s(a, 63, 34, 10, 32)
    a(f"""
    s_mul_i32 s32, s63, 10
    s_sub_u32 s32, s34, s32
    s_lshl_b32 s32, s32, 6
    v_add_u32 v10, s32, v2                     ; nn
    """)
    udiv_v(a, 12, 10, 40, None, 640)
    a(f"""
    v_mul_u32_u24 v13, 40, v12
    v_sub_u32 v13, v10, v13                    ; e
    v_mul_u32_u24 v11, 153600, v12
    s_cmp_eq_u32 s63, 1
    s_cselect_b32 s64, 2048, 0
    s_cselect_b32 s65, 128, 0
    s_add_u32 s65, s65, 4096
    s_mov_b32 s66, 256
    s_cmp_eq_u32 s63, 2
    s_cselect_b32 s64, 5120, s64
    s_cselect_b32 s65, 7168, s65
    s_cselect_b32 s66, 128, s66
    v_lshrrev_b32 v14, 4, v13
    v_lshlrev_b32 v14, 10, v14
    v_add_u32 v14, s64, v14
    v_mov_b32 v15, s65
    v_cmp_gt_u32 vcc, 32, v13
    v_mov_b32 v12, s66
    v_mov_b32 v10, 256
    v_cndmask_b32 v14, v15, v14, vcc
    v_cndmask_b32 v12, v12, v10, vcc           ; g stride
    v_and_b32 v15, 15, v13
    v_lshl_add_u32 v14, v15, 4, v14
    v_add_u32 v11, v11, v14
    v_add_u32 v11, {WQP}, v11
    s_mov_b32 s61, 5
    s_mov_b32 s62, 7680
    K0B_JDONE:
    K0B_NODMA:
    """)
    a("s_waitcnt vmcnt(0)")
    for d in range(12):
        a(f"v_lshlrev_b32 v{96+2*d}, 16, v{16+d}")
        a(f"v_and_b32 v{97+2*d}, 0xffff0000, v{16+d}")
    def lanesum(r, t):
        a(f"""
        s_nop 1
        v_add_f32_dpp v{r}, v{r}, v{r} row_ror:8 row_mask:0xf bank_mask:0xf
        v_mov_b32 v{t}, v{r}
        s_nop 1
        v_permlane16_swap_b32 v{r}, v{t}
        v_add_f32 v{r}, v{r}, v{t}
        v_mov_b32 v{t}, v{r}
        s_nop 1
        v_permlane32_swap_b32 v{r}, v{t}
        v_add_f32 v{r}, v{r}, v{t}
        """)
    a("v_add_f32 v28, v96, v97")
    for d in range(2, 24): a(f"v_add_f32 v28, v28, v{96+d}")
    lanesum(28, 29)
    a(f"""
    v_lshlrev_b32 v30, 2, v3
    s_lshl_b32 s20, s3, 5
    v_add_u32 v31, s20, v30
    ds_write_b32 v31, v28 offset:{L_RED}
    """)
    for i in range(7):
        a(f"v_add_f32 v{64+i}, v{64+i}, v{71+i}")
        a(f"v_add_f32 v{78+i}, v{78+i}, v{85+i}")
    for i in range(7): a(f"v_add_f32 v{64+i}, v{64+i}, v{78+i}")
    for i in range(7): rnd_bf16(a, 64+i, 64+i)
    for i in range(7):
        a(f"v_add_f32 v{71+i}, 1.0, v{64+i}")
    for i in range(7): rnd_bf16(a, 71+i, 71+i)
    a(f"""
    ds_write_b32 v6, v64 offset:{L_S1}
    ds_write_b32 v6, v65 offset:{L_S1+1024}
    ds_write_b32 v6, v74 offset:{L_A1+(768-640)*4}
    ds_write_b32 v6, v75 offset:{L_A1+(1024-640)*4}
    v_cmp_gt_u32 vcc, 128, v0
    v_mov_b32 v78, {L_A1-128*4}
    v_mov_b32 v79, {L_S1+2048}
    v_cndmask_b32 v78, v78, v79, vcc
    v_cndmask_b32 v80, v73, v66, vcc
    v_add_u32 v78, v78, v6
    ds_write_b32 v78, v80
    ds_write_b32 v6, v69 offset:{L_S2}
    ds_write_b32 v6, v77 offset:{L_A2}
    s_cmp_lt_u32 s2, 240
    s_cbranch_scc1 K0B_NOF
    v_cmp_gt_u32 vcc, 80, v0
    s_and_saveexec_b64 s[68:69], vcc
    s_cbranch_execz K0B_NOF2
    s_mov_b32 s22, {MODF}
    buffer_store_dword v69, v7, s[8:11], s22 offen
    K0B_NOF2:
    s_mov_b64 exec, s[68:69]
    K0B_NOF:
    s_waitcnt lgkmcnt(0)
    s_barrier
    ds_read_b32 v32, v30 offset:{L_RED}
    ds_read_b32 v33, v30 offset:{L_RED+32}
    ds_read_b32 v34, v30 offset:{L_RED+64}
    ds_read_b32 v35, v30 offset:{L_RED+96}
    s_waitcnt lgkmcnt(0)
    v_add_f32 v32, v32, v33
    v_add_f32 v34, v34, v35
    v_add_f32 v32, v32, v34
    v_mul_f32 v32, {f2u(1.0/640)}, v32         ; mean
    """)
    a("v_sub_f32 v29, v96, v32\nv_mul_f32 v28, v29, v29")
    for d in range(1, 16):
        a(f"v_sub_f32 v29, v{96+d}, v32\nv_fmac_f32 v28, v29, v29")
    a("s_cmp_ge_u32 s3, 2\ns_cbranch_scc1 K0B_NO3B")
    for d in range(16, 24):
        a(f"v_sub_f32 v29, v{96+d}, v32\nv_fmac_f32 v28, v29, v29")
    a("K0B_NO3B:")
    lanesum(28, 29)
    a(f"""
    ds_write_b32 v31, v28 offset:{L_RED+128}
    s_waitcnt lgkmcnt(0)
    s_barrier
    ds_read_b32 v36, v30 offset:{L_RED+128}
    ds_read_b32 v33, v30 offset:{L_RED+128+32}
    ds_read_b32 v34, v30 offset:{L_RED+128+64}
    ds_read_b32 v35, v30 offset:{L_RED+128+96}
    """)
    a(f"""
    s_lshl_b32 s20, s3, 8
    v_lshl_add_u32 v37, v4, 5, s20
    """)
    for q in range(3):
        a(f"ds_read_b128 {vr(128+16*q,4)}, v37 offset:{L_A1+1024*q}")
        a(f"ds_read_b128 {vr(132+16*q,4)}, v37 offset:{L_A1+1024*q+16}")
        a(f"ds_read_b128 {vr(136+16*q,4)}, v37 offset:{L_S1+1024*q}")
        a(f"ds_read_b128 {vr(140+16*q,4)}, v37 offset:{L_S1+1024*q+16}")
    a(f"""
    s_waitcnt lgkmcnt(12)
    v_add_f32 v36, v36, v33
    v_add_f32 v34, v34, v35
    v_add_f32 v36, v36, v34
    v_mul_f32 v36, {f2u(1.0/640)}, v36         ; var
    """)
    rnd_bf16(a, 36, 36)
    a(f"v_add_f32 v36, {f2u(1e-5)}, v36")
    rnd_bf16(a, 36, 36)
    a("v_sqrt_f32 v36, v36\ns_nop 0")
    rnd_bf16(a, 36, 36)
    a("v_rcp_f32 v36, v36")
    rnd_bf16(a, 32, 32)
    for d in range(24): a(f"v_sub_f32 v{96+d}, v{96+d}, v32")
    for d in range(24): a(f"v_mul_f32 v{96+d}, v{96+d}, v36")
    a("s_waitcnt lgkmcnt(0)")
    for q in range(3):
        for e in range(8):
            a(f"v_fma_f32 v{96+8*q+e}, v{96+8*q+e}, v{128+16*q+e}, v{136+16*q+e}")
        for e in range(4):
            a(f"v_cvt_pk_bf16_f32 v{16+4*q+e}, v{96+8*q+2*e}, v{97+8*q+2*e}")
    a(f"""
    s_lshr_b32 s20, s2, 1
    s_mul_i32 s20, s20, 20480
    s_and_b32 s21, s2, 1
    s_lshl_b32 s21, s21, 7
    s_add_u32 s20, s20, s21
    s_lshl_b32 s21, s3, 11
    s_add_u32 s20, s20, s21
    s_add_u32 s20, s20, {H1P}
    v_lshlrev_b32 v38, 8, v4
    v_lshl_add_u32 v38, v3, 4, v38
    buffer_store_dwordx4 v[16:19], v38, s[8:11], s20 offen
    s_add_u32 s20, s20, 8192
    buffer_store_dwordx4 v[20:23], v38, s[8:11], s20 offen
    s_add_u32 s20, s20, 8192
    s_cmp_ge_u32 s3, 2
    s_cbranch_scc1 K0B_NO3C
    buffer_store_dwordx4 v[24:27], v38, s[8:11], s20 offen
    K0B_NO3C:
    s_cmp_ge_u32 s2, 240
    s_cbranch_scc1 K0B_END
    """)
    a(f"""
    v_bfe_u32 v40, v2, 2, 2
    v_lshlrev_b32 v40, 7, v40
    v_lshrrev_b32 v41, 4, v2
    v_lshl_add_u32 v40, v41, 5, v40
    v_and_b32 v41, 3, v2
    v_lshl_add_u32 v40, v41, 3, v40
    v_add_u32 v40, s28, v40
    """)
    TR = 172
    for u in range(11):
        a(f"ds_read_b64_tr_b16 {vr(TR+4*u,2)}, v40 offset:{u*1024}")
        a(f"ds_read_b64_tr_b16 {vr(TR+2+4*u,2)}, v40 offset:{u*1024+512}")
        if u == 6: a("s_waitcnt lgkmcnt(8)")
    a("s_waitcnt lgkmcnt(0)")
    for u in range(6):
        if u == 5:
            a("s_cmp_lt_u32 s61, 6\ns_cbranch_scc1 K0B_NO6")
        a(f"""
        s_add_u32 s20, s35, {u}
        s_lshr_b32 s21, s20, 2
        s_mul_i32 s21, s21, s62
        s_and_b32 s20, s20, 3
        v_mad_u32_u24 v42, v12, s20, v11
        buffer_store_dwordx4 {vr(TR+20+4*u,4)}, v42, s[8:11], s21 offen
        """)
    a("K0B_NO6:")
    a("s_cmp_ge_u32 s2, 192\ns_cbranch_scc1 K0B_END")
    a(f"s_lshl_b32 s32, s29, 6\nv_add_u32 v10, s32, v2")
    udiv_v(a, 12, 10, 96, None, 1536)
    a(f"""
    v_mul_u32_u24 v13, 96, v12
    v_sub_u32 v13, v10, v13                    ; e
    v_lshrrev_b32 v14, 5, v13                  ; p
    v_mad_u32_u24 v53, v12, 3, v14             ; 3j+p
    v_mul_u32_u24 v11, 81920, v53
    v_and_b32 v14, 0x13, v13
    v_bfe_u32 v15, v13, 2, 1
    v_lshl_add_u32 v14, v15, 3, v14
    v_bfe_u32 v15, v13, 3, 1
    v_lshl_add_u32 v14, v15, 2, v14            ; i
    v_lshl_add_u32 v11, v14, 4, v11
    v_lshlrev_b32 v53, 11, v53
    v_lshl_add_u32 v53, v14, 4, v53
    s_lshl_b32 s20, s60, 10
    s_add_u32 s20, s20, {WGP}
    v_add_u32 v11, s20, v11
    s_mul_i32 s20, s3, 160
    v_mov_b32 v43, s20
    v_mov_b32 v44, 0                           ; u
    v_mov_b32 v45, 0                           ; t
    v_mov_b32 v46, 0x3f803f80
    """)
    AB = [64, 80, 128, 144, 216]
    for u in range(5):
        a(f"ds_read_b128 {vr(AB[u],4)}, v43 offset:{L_A2+32*u}")
        a(f"ds_read_b128 {vr(AB[u]+4,4)}, v43 offset:{L_A2+32*u+16}")
        a(f"ds_read_b128 {vr(AB[u]+8,4)}, v43 offset:{L_S2+32*u}")
        a(f"ds_read_b128 {vr(AB[u]+12,4)}, v43 offset:{L_S2+32*u+16}")
        if u == 2: a("s_waitcnt lgkmcnt(4)")
    a("s_waitcnt lgkmcnt(0)")
    for u in range(5):
        w = TR + 4*u
        A = AB[u]
        for d in range(4):
            a(f"v_lshlrev_b32 v{96+2*d}, 16, v{w+d}")
            a(f"v_and_b32 v{97+2*d}, 0xffff0000, v{w+d}")
        for e in range(8): a(f"v_fmac_f32 v45, v{96+e}, v{A+8+e}")
        for e in range(8): a(f"v_mul_f32 v{96+e}, v{96+e}, v{A+e}")
        for d in range(4): a(f"v_cvt_pk_bf16_f32 v{104+4*u+d}, v{96+2*d}, v{97+2*d}")
        for d in range(4): a(f"v_dot2_f32_bf16 v44, v{104+4*u+d}, v46, v44")
        a(f"""
        s_add_u32 s20, s30, {u}
        s_lshr_b32 s21, s20, 1
        s_lshl_b32 s21, s21, 11
        s_and_b32 s20, s20, 1
        s_lshl_b32 s20, s20, 9
        s_add_u32 s21, s21, s20
        buffer_store_dwordx4 {vr(104+4*u,4)}, v11, s[8:11], s21 offen
        """)
    a(f"""
    s_lshl_b32 s20, s3, 9
    v_lshl_add_u32 v47, v2, 2, s20
    ds_write_b32 v47, v44 offset:{L_UT}
    ds_write_b32 v47, v45 offset:{L_UT+256}
    s_waitcnt lgkmcnt(0)
    s_barrier
    s_cmp_lg_u32 s3, 0
    s_cbranch_scc1 K0B_END
    """)
    for w in range(4):
        a(f"ds_read_b32 v{56+w}, v6 offset:{L_UT+512*w}")
        a(f"ds_read_b32 v{60+w}, v6 offset:{L_UT+512*w+256}")
    a(f"""
    s_lshr_b32 s20, s24, 1
    s_lshl_b32 s20, s20, 9
    s_and_b32 s21, s24, 1
    s_lshl_b32 s21, s21, 3
    s_add_u32 s20, s20, s21
    s_lshl_b32 s21, s60, 10
    s_add_u32 s20, s20, s21
    s_add_u32 s20, s20, {WXP}
    s_waitcnt lgkmcnt(0)
    v_add_f32 v56, v56, v57
    v_add_f32 v58, v58, v59
    v_add_f32 v60, v60, v61
    v_add_f32 v62, v62, v63
    v_add_f32 v56, v56, v58
    v_add_f32 v60, v60, v62
    """)
    rnd_bf16(a, 57, 56); rnd_bf16(a, 61, 60)
    a(f"""
    v_sub_f32 v58, v56, v57
    v_sub_f32 v62, v60, v61
    v_cvt_pk_bf16_f32 v56, v57, v58
    v_cvt_pk_bf16_f32 v57, v61, v62
    buffer_store_dwordx2 v[56:57], v53, s[8:11], s20 offen
    K0B_END:
    s_endpgm
    """)
    a.end(name, 240, 80)
```

```python
import re
TRANS = ("v_exp_f32", "v_rcp_f32", "v_rsq_f32", "v_sqrt_f32", "v_log_f32", "v_sin_f32", "v_cos_f32")
REG = re.compile(r"^(-|abs\()?([vas])(?:\[(\d+):(\d+)\]|(\d+))\)?$")
def regs(op):
    op = op.strip()
    if op in ("vcc", "exec", "m0", "scc"): return {op}
    if op in ("vcc_lo", "vcc_hi"): return {"vcc"}
    m = REG.match(op)
    if not m: return set()
    k = m.group(2)
    if m.group(5) is not None: return {k + m.group(5)}
    return {k + str(i) for i in range(int(m.group(3)), int(m.group(4)) + 1)}

class I:
    def __init__(self, text):
        self.text = text
        t = text.split(";")[0].strip()
        self.label = t[:-1] if t.endswith(":") else None
        self.is_inst = bool(t) and self.label is None and not t.startswith(".")
        self.rd = set(); self.wr = set(); self.kind = None; self.states = 1
        self.A = self.B = self.C = set(); self.passes = 0; self.target = None; self.uncond = False
        self.data = set(); self.wide_store = False; self.ldsdma = False; self.dpp = False
        if not self.is_inst: return
        parts = t.split(None, 1)
        mn = self.mn = parts[0]
        rest = parts[1] if len(parts) > 1 else ""
        ops = [o.strip() for o in rest.split(",")]
        if ops:
            last = ops[-1].split()
            mods = last[1:] if last else []
            ops[-1] = last[0] if last else ""
        else: mods = []
        R = [regs(o) for o in ops]
        U = lambda l: set().union(*l) if l else set()
        if mn.startswith("v_mfma"):
            self.kind = "mfma"; self.wr = R[0]; self.A, self.B, self.C = R[1], R[2], R[3]
            self.rd = R[1] | R[2] | R[3]; self.passes = 8 if "32x32x16" in mn else 4
        elif mn.startswith("v_"):
            self.kind = "valu"; self.wr = set(R[0]); self.rd = U(R[1:])
            if mn.startswith("v_permlane") and "swap" in mn: self.wr = R[0] | R[1]; self.rd = R[0] | R[1]
            if mn.startswith(("v_fmac", "v_dot2c", "v_pk_fmac")): self.rd |= R[0]
            if mn.startswith(("v_add_co", "v_sub_co", "v_addc_co")): self.wr |= R[1]; self.rd = U(R[2:])
            if "_dpp" in mn: self.dpp = True; self.rd |= R[0]
        elif mn.startswith("ds_"):
            self.kind = "ds"
            if mn.startswith("ds_read") or "permute" in mn or "swizzle" in mn: self.wr = R[0]; self.rd = U(R[1:])
            else: self.rd = U(R)
        elif mn.startswith(("buffer_", "global_")):
            self.kind = "vmem"
            if "lds" in mods or "_lds_" in mn: self.ldsdma = True; self.rd = U(R) | {"m0"}
            elif "load" in mn: self.wr = R[0]; self.rd = U(R[1:])
            elif "atomic" in mn and "sc0" in mods: self.wr = R[0]; self.rd = U(R)
            else:
                self.rd = U(R)
                if "store" in mn and ("x4" in mn or "x3" in mn):
                    self.wide_store = True; self.data = R[0] if mn.startswith("buffer") else R[1]
        elif mn.startswith("s_"):
            self.kind = "salu"
            if mn == "s_nop": self.states = int(ops[0], 0) + 1
            elif mn.startswith("s_cbranch"): self.target = ops[0]
            elif mn == "s_branch": self.target = ops[0]; self.uncond = True
            elif mn == "s_endpgm": self.uncond = True
            elif mn.startswith(("s_cmp", "s_waitcnt", "s_barrier", "s_sleep", "s_setprio", "s_bitcmp")): self.rd = U(R)
            else: self.wr = R[0] if R else set(); self.rd = U(R[1:])

def need(p, c):
    n = 0
    isv = lambda s: {r for r in s if r[0] in "va" and r not in ("vcc",)}
    iss = lambda s: {r for r in s if r[0] == "s" or r == "vcc"}
    if p.kind == "valu":
        w = isv(p.wr); sw = iss(p.wr)
        if c.kind == "mfma" and w & c.rd: n = max(n, 2)
        if c.kind == "valu":
            if p.mn.startswith(TRANS) and not c.mn.startswith(TRANS) and w & c.rd: n = max(n, 1)
            if (c.mn.startswith("v_permlane") or c.dpp) and w & c.rd: n = max(n, 2)
            if c.mn.startswith(("v_readlane", "v_readfirstlane")) and w & c.rd: n = max(n, 1)
            if sw & c.rd: n = max(n, 4 if c.mn.startswith(("v_readlane", "v_writelane")) else 2)
            if p.mn.startswith("v_dot") and (w & (c.rd | c.wr)):
                if not (c.mn == p.mn): n = max(n, 3)
                else: n = max(n, 0)
        if p.mn.startswith("v_dot") and c.kind in ("mfma", "ds", "vmem") and w & c.rd: n = max(n, 3)
        if c.kind == "vmem" and sw & c.rd: n = max(n, 5)
        if c.kind == "salu" and sw & c.rd: n = max(n, 1)
    if p.kind == "mfma":
        D = p.wr; big = 12 if p.passes == 8 else 8
        if c.kind == "mfma":
            if D & (c.A | c.B): n = max(n, big)
            if D & c.C and not (c.C == D and c.passes == p.passes): n = max(n, big - 2)
            if D & c.wr and not (D & c.C): n = max(n, big)
        elif c.kind in ("valu", "ds", "vmem"):
            if D & (c.rd | c.wr): n = max(n, big)
            if c.kind == "valu" and p.C & c.wr: n = max(n, 7 if p.passes == 8 else 3)
    if p.kind == "salu" and "m0" in p.wr and c.ldsdma: n = max(n, 1)
    if p.kind == "vmem" and p.wide_store and p.data & c.wr: n = max(n, 2 if c.kind == "valu" else 1)
    return n

def fix(lines, verbose=False):
    ins = [I(l) for l in lines]
    out = []
    branch_src = {}
    inserted = 0
    for c in ins:
        if c.is_inst:
            worst = 0
            stack = [(len(out) - 1, 0)]
            seen = {}
            while stack:
                idx, dist = stack.pop()
                while idx >= 0 and dist < 12:
                    if seen.get(idx, 99) <= dist: break
                    seen[idx] = dist
                    p = out[idx]
                    if p.label is not None:
                        for b in branch_src.get(p.label, []):
                            stack.append((b - 1, dist + 1))
                    if p.is_inst:
                        if p.uncond: break
                        k = need(p, c) - dist
                        worst = max(worst, k)
                        dist += p.states
                    idx -= 1
            if worst > 0:
                inserted += 1
                out.append(I(f"  s_nop {worst-1}"))
            if c.target: branch_src.setdefault(c.target, []).append(len(out))
        out.append(c)
    if verbose: print("hazard nops inserted:", inserted)
    return [x.text for x in out]
```

```python
from gen import *

class Cnt:
    def __init__(self, a, name, maxv):
        self.a, self.name, self.maxv, self.ops, self.done = a, name, maxv, [], 0
    def issue(self, tag): self.ops.append(tag)
    def wait_str(self, tag):
        idx = max((i for i, t in enumerate(self.ops) if t == tag), default=None)
        assert idx is not None, tag
        if idx < self.done: return None
        n = min(len(self.ops) - 1 - idx, self.maxv)
        self.done = max(self.done, len(self.ops) - n)
        return f"s_waitcnt {self.name}({n})"
    def wait(self, tag):
        s = self.wait_str(tag)
        if s: self.a(s)
    def wait_all(self):
        self.done = len(self.ops); self.a(f"s_waitcnt {self.name}(0)")

M16 = "v_mfma_f32_16x16x32_bf16"
M32 = "v_mfma_f32_32x32x16_bf16"
SLOT = 20480
NEG = f2u(-1e30)

S_WV = 3
S_WS, S_X, S_OUT = 4, 8, 12
S_I, S_J, S_I2, S_J2 = 16, 17, 18, 19
S_SEL, S_G0 = 40, 42
V_TID, V_LANE, V_L16, V_L16B, V_L16C, V_W0, V_W1 = 0, 1, 2, 3, 4, 5, 6

class K1:
    def __init__(self, a, fused=False):
        self.a = a; self.fused = fused
        self.ld = " sc1" if fused else ""
        self.st = " sc0 sc1" if fused else ""
    def begin(self, name):
        a = self.a
        self.name = name
        self.vm = Cnt(a, "vmcnt", 63); self.lg = Cnt(a, "lgkmcnt", 15)
        a.begin(name, 256, 256, lds=163840)
        a(f"""
        s_load_dwordx2 s[20:21], s[0:1], 0
        s_load_dwordx2 s[22:23], s[0:1], 72
        s_load_dwordx2 s[24:25], s[0:1], 88
        s_cmp_ge_u32 s2, 256
        s_cbranch_scc1 {name}_END
        v_lshrrev_b32 v2, 6, v0
        v_and_b32 v1, 63, v0
        v_readfirstlane_b32 s3, v2
        v_lshlrev_b32 v2, 4, v1
        v_add_u32 v3, 0x10000, v2
        v_add_u32 v4, 0x20000, v2
        s_and_b32 s26, s2, 7
        s_lshr_b32 s27, s2, 3
        s_lshr_b32 s28, s27, 3
        s_and_b32 s19, s27, 7
        s_lshl_b32 s18, s26, 2
        s_add_u32 s18, s18, s28
        s_lshr_b32 s16, s26, 1
        s_lshl_b32 s16, s16, 2
        s_add_u32 s16, s16, s28
        s_and_b32 s17, s26, 1
        s_lshl_b32 s17, s17, 3
        s_add_u32 s17, s17, s19
        s_lshl_b32 s26, s3, 12
        v_add_u32 v5, s26, v2
        s_lshl_b32 s27, s3, 10
        s_add_u32 s27, s27, 16384
        v_add_u32 v6, s27, v2
        s_mov_b32 s44, s26
        s_mov_b32 s45, s27
        s_waitcnt lgkmcnt(0)
        """)
        srd(a, S_WS, 24, 25, WS_USED)
        srd(a, S_X, 20, 21, 2048*1280)
        srd(a, S_OUT, 22, 23, 2048*1280)
    def end(self):
        self.a(f"{self.name}_END:\ns_endpgm")
        self.a.end(self.name, 256, 96, agpr=256)

    def lds(self, off):
        return (V_L16, V_L16B, V_L16C)[off >> 16], off & 0xffff
    def ds_frag(self, dst, off, tag):
        v, imm = self.lds(off)
        self.lg.issue(tag)
        return f"ds_read_b128 {dst}, v{v} offset:{imm}"
    def stage_ops(self, sreg, slot, tag):
        a = self.a; ops = []
        def mk(i):
            def f():
                if i == 0: a(f"s_add_u32 m0, s44, {slot*SLOT}")
                if i == 4: a(f"s_add_u32 m0, s45, {slot*SLOT}")
                if i < 4: a(f"buffer_load_dwordx4 v{V_W0}, s[4:7], s{sreg} offen offset:{1024*i} lds")
                else:
                    a(f"buffer_load_dwordx4 v{V_W1}, s[4:7], s{sreg} offen lds")
                    a(f"s_add_u32 s{sreg}, s{sreg}, {SLOT}")
                self.vm.issue(tag)
            return f
        return [mk(i) for i in range(5)]

    def weave(self, M, F, lead=1):
        a = self.a
        n = len(M); slots = max(n - lead + 1, 1); fi = 0
        for k, m in enumerate(M):
            a(m)
            if k + 1 >= lead:
                upto = len(F) * (k + 2 - lead) // slots
                while fi < upto:
                    f = F[fi]; fi += 1
                    if callable(f): f()
                    elif f: a(f)
        while fi < len(F):
            f = F[fi]; fi += 1
            if callable(f): f()
            elif f: a(f)

    def phaseB(self, P=4):
        a, vm, lg = self.a, self.vm, self.lg
        NS = 7
        VA1, VH, VB0, VB1 = 8, 9, 10, 11
        BIAS = 12
        ACC = 32; HAC = 96
        AB = 0
        AA = 64
        AH = AA + 8 * (P + 1)
        sA, sH, sB = 46, 47, 48
        a(f"""
        s_lshl_b32 s26, s16, 3
        s_lshl_b32 s27, s3, 1
        s_add_u32 s27, s27, s26
        s_mul_i32 s{sA}, s27, 20480
        s_add_u32 s{sA}, s{sA}, {H1P}
        s_mov_b32 s49, s27
        s_max_u32 s26, s26, 1
        s_sub_u32 s26, s26, 1
        s_mul_i32 s{sH}, s26, 20480
        s_lshl_b32 s26, s3, 10
        s_add_u32 s{sH}, s{sH}, s26
        s_add_u32 s{sH}, s{sH}, {H1P}
        s_mul_i32 s{sB}, s17, 153600
        s_add_u32 s{sB}, s{sB}, {WQP}
        s_lshl_b32 s50, s3, 11
        v_add_u32 v{VA1}, 20480, v2
        v_and_b32 v20, 8, v1
        v_cmp_eq_u32 vcc, 0, v20
        v_mov_b32 v21, {OOB}
        v_add_u32 v{VB0}, s50, v2
        v_cndmask_b32 v{VH}, v2, v21, vcc
        v_lshrrev_b32 v22, 4, v1
        v_and_b32 v23, 7, v1
        v_lshlrev_b32 v22, 7, v22
        v_lshl_add_u32 v22, v23, 4, v22
        v_add_u32 v22, 6144, v22
        v_cndmask_b32 v22, v21, v22, vcc
        s_cmp_eq_u32 s3, 3
        s_cselect_b64 vcc, -1, 0
        v_cndmask_b32 v{VB1}, v{VB0}, v22, vcc
        """)
        def group(ks):
            ops = []
            def halo():
                m = ks // 4
                a(f"buffer_load_dwordx4 {ar(AH+4*m,4)}, v{VH}, s[4:7], s{sH} offen")
                a(f"s_add_u32 s{sH}, s{sH}, 4096"); vm.issue(("H", m))
            def a0():
                a(f"buffer_load_dwordx4 {ar(AA+8*(ks%(P+1)),4)}, v2, s[4:7], s{sA} offen"); vm.issue(("A", ks))
            def a1():
                a(f"buffer_load_dwordx4 {ar(AA+8*(ks%(P+1))+4,4)}, v{VA1}, s[4:7], s{sA} offen"); vm.issue(("A", ks))
                a(f"s_add_u32 s{sA}, s{sA}, 1024")
            def d0():
                a(f"s_add_u32 m0, s50, {(ks%NS)*8192}")
                a(f"buffer_load_dwordx4 v{VB0}, s[4:7], s{sB} offen lds"); vm.issue(("B", ks))
            def d1():
                a(f"buffer_load_dwordx4 v{VB1}, s[4:7], s{sB} offen offset:1024 lds"); vm.issue(("B", ks))
                a(f"s_add_u32 s{sB}, s{sB}, 7680")
            if ks % 4 == 0: ops.append(halo)
            return ops + [a0, a1, d0, d1]
        for ks in range(P):
            for f in group(ks): f()
        a(f"""
        s_mov_b32 s{S_SEL}, 0
        s_mov_b32 s{S_SEL+1}, 0x00ff00ff
        s_mov_b32 s{S_G0}, 0xffff
        s_mov_b32 s{S_G0+1}, 0
        v_and_b32 v20, 15, v1
        v_lshrrev_b32 v21, 4, v1
        v_lshlrev_b32 v21, 2, v21
        v_sub_u32 v20, v20, v21
        v_cndmask_b32 v21, 0, 16, s[{S_SEL}:{S_SEL+1}]
        v_add_u32 v20, v20, v21
        v_mov_b32 v22, {NEG}
        """)
        for r in range(4):
            a(f"v_subrev_u32 v21, {r}, v20")
            a(f"v_cmp_lt_u32 vcc, 7, v21")
            a(f"v_cndmask_b32 v{BIAS+r}, 0, v22, vcc")
        a(f"""
        s_and_b32 s26, s49, 63
        s_cmp_eq_u32 s26, 0
        s_cselect_b64 vcc, s[{S_SEL}:{S_SEL+1}], 0
        """)
        for r in range(4):
            a(f"v_cndmask_b32 v{BIAS+4+r}, v{BIAS+r}, v22, vcc")
        def reads(ks):
            return [(lambda t=t: a(self.ds_frag(ar(AB+32*(ks&1)+4*t,4), (ks%NS)*8192 + t*1024, ("B", ks)))) for t in range(8)]
        vm.wait(("B", 0)); a("s_barrier")
        for f in reads(0): f()
        for ks in range(20):
            lg.wait(("B", ks))
            M = []
            for t in range(8):
                for rt in range(2):
                    d = vr(ACC+32*rt+4*t, 4); A = ar(AA+8*(ks%(P+1))+4*rt, 4); B = ar(AB+32*(ks&1)+4*t, 4)
                    c = "0" if ks == 0 else d
                    M.append(f"{M16} {d}, {B}, {A}, {c}" if t < 5 else f"{M16} {d}, {A}, {B}, {c}")
            F = []
            if ks + P < 20: F += group(ks + P)
            F += self.extraB(ks)
            if ks + 1 < 20:
                F += [lambda ks=ks: vm.wait(("B", ks+1)), "s_barrier"] + reads(ks + 1)
            self.weave(M, F, lead=2)
            m = ks // 4
            lab = a.label("BH")
            a(f"s_cmp_lg_u32 s3, {ks%4}\ns_cbranch_scc1 {lab}")
            for t in range(2, 8):
                d = vr(HAC+4*(t-2), 4); A = ar(AH+4*m, 4); B = ar(AB+32*(ks&1)+4*t, 4)
                c = "0" if m == 0 else d
                a(f"{M16} {d}, {B}, {A}, {c}" if t < 5 else f"{M16} {d}, {A}, {B}, {c}")
            a(f"{lab}:")
        KG = 120
        VG = 138
        QF = 156
        S = 172
        T = lambda rt, t: ACC + 32*rt + 4*t
        def pk(dst, src):
            a(f"v_cvt_pk_bf16_f32 v{dst}, v{src}, v{src+1}")
            a(f"v_cvt_pk_bf16_f32 v{dst+1}, v{src+2}, v{src+3}")
        XH = 0; XK = 18432
        lab = a.label("BX")
        a(f"""
        s_mul_i32 s26, s3, 6144
        s_sub_u32 s26, s26, 6144
        v_add_u32 v20, s26, v2
        s_cmp_eq_u32 s3, 0
        s_cbranch_scc1 {lab}
        """)
        for t in range(6): a(f"ds_write_b128 v20, {vr(HAC+4*t,4)} offset:{XH+1024*t}")
        a(f"{lab}:")
        for rt in (1, 0):
            kg = KG + 6 + 6*rt; q = QF + 8*rt
            pk(kg, T(rt, 2)); pk(kg+2, T(rt, 3)); pk(q+6, T(rt, 4))
            a(f"v_mov_b32 v{kg+4}, 0\nv_mov_b32 v{kg+5}, 0")
            for t in range(3): pk(VG + 6*t + 2 + 2*rt, T(rt, 5+t))
            a(f"v_permlane32_swap_b32 v{q+6}, v{kg+4}\nv_permlane32_swap_b32 v{q+7}, v{kg+5}")
            if rt == 1:
                a(f"""
                s_mul_i32 s26, s3, 3072
                v_add_u32 v21, s26, v2
                v_lshrrev_b32 v22, 1, v2
                v_add_u32 v22, s26, v22
                ds_write_b128 v21, {vr(kg,4)} offset:{XK}
                ds_write_b64 v22, {vr(kg+4,2)} offset:{XK+1024}
                """)
                for t in range(3): a(f"ds_write_b64 v22, {vr(VG+6*t+4,2)} offset:{XK+1536+512*t}")
            pk(q, T(rt, 0)); pk(q+4, T(rt, 1))
            for e in range(2):
                a(f"v_cndmask_b32 v{q+2+e}, 0, v{q+4+e}, s[{S_G0}:{S_G0+1}]")
            for e in range(2):
                a(f"v_cndmask_b32 v{q+4+e}, v{q+4+e}, 0, s[{S_G0}:{S_G0+1}]")
        a("s_waitcnt lgkmcnt(0)\ns_barrier")
        lab0 = a.label("BW0"); lab1 = a.label("BW1")
        a(f"s_cmp_eq_u32 s3, 0\ns_cbranch_scc1 {lab0}")
        a(f"ds_read_b128 {vr(KG,4)}, v21 offset:{XK-3072}")
        a(f"ds_read_b64 {vr(KG+4,2)}, v22 offset:{XK+1024-3072}")
        for t in range(3): a(f"ds_read_b64 {vr(VG+6*t,2)}, v22 offset:{XK+1536+512*t-3072}")
        a(f"s_branch {lab1}\n{lab0}:")
        HT = 32
        for w in range(3):
            for t in range(6):
                dst = HT + 24*w + 4*t if w < 2 else 200 + 4*t
                a(f"ds_read_b128 {vr(dst,4)}, v2 offset:{XH+6144*w+1024*t}")
            if w == 1: a("s_waitcnt lgkmcnt(6)")
        a(f"{lab1}:")
        cs = 51
        a(f"s_mov_b32 s{cs}, {f2u(20**-0.5 * LOG2E)}")
        OUT = 224
        def unit(rt):
            kp = KG + 6*rt; kc = KG + 6 + 6*rt; q = QF + 8*rt
            bias = BIAS + (4 if rt == 0 else 0)
            Z = S + 16; MX = S + 24; TM = S + 26
            for h in range(2):
                a(f"{M16} {vr(S+8*h,4)}, {vr(kp+2*h,4)}, {vr(q+4*h,4)}, 0")
                a(f"{M16} {vr(S+8*h+4,4)}, {vr(kc+2*h,4)}, {vr(q+4*h,4)}, 0")
            for h in range(2):
                for r in range(4): a(f"v_cndmask_b32 v{Z+4*h+r}, v{S+8*h+4+r}, v{S+8*h+r}, s[{S_SEL}:{S_SEL+1}]")
            for h in range(2):
                for r in range(4): a(f"v_fma_f32 v{Z+4*h+r}, v{Z+4*h+r}, s{cs}, v{bias+r}")
            for h in range(2): a(f"v_max3_f32 v{MX+h}, v{Z+4*h}, v{Z+4*h+1}, v{Z+4*h+2}")
            for h in range(2): a(f"v_max_f32 v{MX+h}, v{MX+h}, v{Z+4*h+3}")
            def xl(op):
                for sw in ("v_permlane16_swap_b32", "v_permlane32_swap_b32"):
                    for h in range(2): a(f"v_mov_b32 v{TM+h}, v{MX+h}")
                    for h in range(2): a(f"{sw} v{MX+h}, v{TM+h}")
                    for h in range(2): a(f"{op} v{MX+h}, v{MX+h}, v{TM+h}")
            xl("v_max_f32")
            for h in range(2):
                for r in range(4): a(f"v_sub_f32 v{Z+4*h+r}, v{Z+4*h+r}, v{MX+h}")
            for h in range(2):
                for r in range(4): a(f"v_exp_f32 v{Z+4*h+r}, v{Z+4*h+r}")
            for h in range(2): a(f"v_add_f32 v{MX+h}, v{Z+4*h}, v{Z+4*h+1}")
            for h in range(2): a(f"v_add_f32 v{TM+h}, v{Z+4*h+2}, v{Z+4*h+3}")
            for h in range(2): a(f"v_add_f32 v{MX+h}, v{MX+h}, v{TM+h}")
            xl("v_add_f32")
            for h in range(2): a(f"v_rcp_f32 v{MX+h}, v{MX+h}")
            for h in range(2):
                for r in range(4): a(f"v_mul_f32 v{Z+4*h+r}, v{Z+4*h+r}, v{MX+h}")
            for h in range(2): pk(S+4*h+2, Z+4*h)
            for h in range(2):
                for e in range(2): a(f"v_cndmask_b32 v{S+4*h+e}, 0, v{S+4*h+2+e}, s[{S_SEL}:{S_SEL+1}]")
                for e in range(2): a(f"v_cndmask_b32 v{S+4*h+2+e}, v{S+4*h+2+e}, 0, s[{S_SEL}:{S_SEL+1}]")
            O = S + 8
            a(f"{M16} {vr(O,4)}, {vr(VG+2*rt,4)}, {vr(S,4)}, 0")
            a(f"{M16} {vr(O+4,4)}, {vr(VG+6+2*rt,4)}, {vr(S,4)}, 0")
            a(f"{M16} {vr(O+8,4)}, {vr(VG+6+2*rt,4)}, {vr(S+4,4)}, 0")
            a(f"{M16} {vr(O+12,4)}, {vr(VG+12+2*rt,4)}, {vr(S+4,4)}, 0")
            pk(OUT+4*rt, O)
            for r in range(4): a(f"v_cndmask_b32 v{O+4+r}, v{O+8+r}, v{O+4+r}, s[{S_G0}:{S_G0+1}]")
            pk(OUT+4*rt+2, O+4)
            pk(OUT+8+2*rt, O+12)
        a(f"""
        s_mul_i32 s52, s49, 20480
        s_mul_i32 s26, s17, 1280
        s_add_u32 s52, s52, s26
        s_add_u32 s52, s52, {OP}
        """)
        unit(1)
        a(f"buffer_store_dwordx4 {vr(OUT+4,4)}, v{VA1}, s[4:7], s52 offen{self.st}"); vm.issue("O")
        a("s_waitcnt lgkmcnt(0)")
        lab = a.label("BW2")
        a(f"s_cmp_lg_u32 s3, 0\ns_cbranch_scc1 {lab}")
        for e in range(0, 24, 2):
            a(f"v_pk_add_f32 {vr(HAC+e,2)}, {vr(HAC+e,2)}, {vr(HT+e,2)}")
            a(f"v_pk_add_f32 {vr(HT+24+e,2)}, {vr(HT+24+e,2)}, {vr(200+e,2)}")
        for e in range(0, 24, 2):
            a(f"v_pk_add_f32 {vr(HAC+e,2)}, {vr(HAC+e,2)}, {vr(HT+24+e,2)}")
        pk(KG, HAC); pk(KG+2, HAC+4); pk(HT, HAC+8)
        a(f"v_mov_b32 v{KG+4}, 0\nv_mov_b32 v{KG+5}, 0")
        for t in range(3): pk(VG+6*t, HAC+12+4*t)
        a(f"v_permlane32_swap_b32 v{HT}, v{KG+4}\nv_permlane32_swap_b32 v{HT+1}, v{KG+5}")
        a(f"{lab}:")
        unit(0)
        a(f"buffer_store_dwordx4 {vr(OUT,4)}, v2, s[4:7], s52 offen{self.st}"); vm.issue("O")
        a(f"""
        v_permlane16_swap_b32 v{OUT+8}, v{OUT+10}
        v_permlane16_swap_b32 v{OUT+9}, v{OUT+11}
        v_and_b32 v20, 15, v1
        v_lshlrev_b32 v20, 4, v20
        v_lshrrev_b32 v21, 4, v1
        v_mul_u32_u24 v22, 20480, v21
        v_add_u32 v20, v20, v22
        v_cmp_lt_u32 vcc, 31, v1
        v_mov_b32 v21, {OOB}
        v_cndmask_b32 v20, v20, v21, vcc
        buffer_store_dwordx4 {vr(OUT+8,4)}, v20, s[4:7], s52 offen offset:1024{self.st}
        """); vm.issue("O")
    def extraB(self, ks): return []

    def gemm80(self, NK, sA, slot0, stage_issue, AA, NA, AB, ACC, LA=2, pre=None):
        a, vm, lg = self.a, self.vm, self.lg
        NB = LA + 1
        def aload(ks):
            def f():
                a(f"buffer_load_dwordx4 {ar(AA+4*(ks%NA),4)}, v2, s[4:7], s{sA} offen offset:{1024*(ks%4)}{self.ld}"); vm.issue(("A", ks))
                if ks % 4 == 3: a(f"s_add_u32 s{sA}, s{sA}, 4096")
            return f
        def reads(ks):
            if ks >= NK: return []
            s = ks // 4
            F = []
            if ks % 4 == 0:
                F += [lambda: vm.wait(("W", self.ph, s)), "s_barrier"] + stage_issue(s)
            base = ((slot0 + s) % 8) * SLOT + (ks % 4) * 5120
            F += [(lambda t=t: a(self.ds_frag(ar(AB+20*(ks%NB)+4*t,4), base + 1024*t, ("B", ks)))) for t in range(5)]
            return F
        PA = NA - 1
        pre(aload)
        for ks in range(LA):
            for f in reads(ks):
                f() if callable(f) else a(f)
        for ks in range(NK):
            lg.wait(("B", ks)); vm.wait(("A", ks))
            M = []
            for t in range(5):
                d = vr(ACC+4*t, 4)
                M.append(f"{M16} {d}, {ar(AB+20*(ks%NB)+4*t,4)}, {ar(AA+4*(ks%NA),4)}, {'0' if ks == 0 else d}")
            F = reads(ks + LA)
            if ks + PA < NK and ks >= 0: F = F + [aload(ks + PA)]
            self.weave(M, F, lead=1)

    def row_offsets(self):
        a = self.a
        a(f"""
        s_lshl_b32 s54, s18, 2
        s_add_u32 s54, s54, s3                 ; rt
        s_and_b32 s26, s54, 63
        s_lshl_b32 s26, s26, 5
        s_lshr_b32 s27, s54, 6
        s_add_u32 s26, s26, s27
        s_mul_i32 s53, s26, 1280
        s_mul_i32 s26, s19, 160
        s_add_u32 s53, s53, s26
        v_and_b32 v26, 15, v1
        v_lshrrev_b32 v27, 4, v1
        v_mul_u32_u24 v24, 2560, v26
        v_lshl_add_u32 v25, v27, 3, v24
        v_lshl_add_u32 v24, v27, 4, v24
        v_lshlrev_b32 v28, 5, v27              ; g*32
        v_lshlrev_b32 v29, 4, v27              ; g*16
        """)
    def load_gate(self, col0, G):
        a, vm = self.a, self.vm
        a(f"s_mul_i32 s26, s19, 320\ns_add_u32 s26, s26, {MODF + col0*4}")
        for pp in range(2):
            a(f"buffer_load_dwordx4 {vr(G+8*pp,4)}, v28, s[4:7], s26 offen offset:{128*pp}"); vm.issue("G")
            a(f"buffer_load_dwordx4 {vr(G+8*pp+4,4)}, v28, s[4:7], s26 offen offset:{128*pp+16}"); vm.issue("G")
        a(f"buffer_load_dwordx4 {vr(G+16,4)}, v29, s[4:7], s26 offen offset:256"); vm.issue("G")
    def residual(self, ACC, G, X, U):
        a = self.a
        for d in range(10):
            a(f"v_lshlrev_b32 v{U+2*d}, 16, v{X+d}")
            a(f"v_and_b32 v{U+2*d+1}, 0xffff0000, v{X+d}")
        for e in range(20): a(f"v_fmac_f32 v{U+e}, v{ACC+e}, v{G+e}")
        for d in range(10): a(f"v_cvt_pk_bf16_f32 v{X+d}, v{U+2*d}, v{U+2*d+1}")

    def phaseC(self):
        a, vm, lg = self.a, self.vm, self.lg
        self.ph = "C"
        ACC, G, X, U = 32, 52, 240, 72
        sA, sW = 46, 47
        self.row_offsets()
        a(f"""
        s_mul_i32 s{sA}, s54, 20480
        s_add_u32 s55, s{sA}, {X1P}
        s_add_u32 s{sA}, s{sA}, {OP}
        s_mul_i32 s{sW}, s19, 102400
        s_add_u32 s{sW}, s{sW}, {WOP}
        """)
        def pre(aload):
            for s in range(5):
                for ks in range(4*s, 4*s+4):
                    if ks < 19: aload(ks)()
                for f in self.stage_ops(sW, 3 + s, ("W", "C", s)): f()
            a(f"buffer_load_dwordx4 {vr(X,4)}, v24, s[8:11], s53 offen"); vm.issue("G")
            a(f"buffer_load_dwordx4 {vr(X+4,4)}, v24, s[8:11], s53 offen offset:64"); vm.issue("G")
            a(f"buffer_load_dwordx2 {vr(X+8,2)}, v25, s[8:11], s53 offen offset:128"); vm.issue("G")
            self.load_gate(1280, G)
        self.gemm80(20, sA, 3, lambda s: [], 64, 20, 0, ACC, pre=pre)
        vm.wait("G")
        self.residual(ACC, G, X, U)
        a(f"""
        s_mul_i32 s26, s19, 2560
        s_add_u32 s55, s55, s26
        buffer_store_dwordx4 {vr(X,4)}, v2, s[4:7], s55 offen{self.st}
        buffer_store_dwordx4 {vr(X+4,4)}, v2, s[4:7], s55 offen offset:1024{self.st}
        v_mov_b32 v{U}, v{X+8}
        v_mov_b32 v{U+1}, v{X+9}
        v_mov_b32 v{U+2}, v{X+8}
        v_mov_b32 v{U+3}, v{X+9}
        v_lshrrev_b32 v20, 5, v1
        v_lshlrev_b32 v20, 8, v20
        v_lshl_add_u32 v20, v26, 4, v20
        v_and_b32 v21, 16, v1
        v_cmp_eq_u32 vcc, 0, v21
        v_mov_b32 v21, {OOB}
        v_permlane16_swap_b32 v{U}, v{U+2}
        v_permlane16_swap_b32 v{U+1}, v{U+3}
        v_cndmask_b32 v20, v21, v20, vcc
        buffer_store_dwordx4 {vr(U,4)}, v20, s[4:7], s55 offen offset:2048{self.st}
        v_mov_b32 v22, 0x3f803f80
        """)
        for _ in range(3): vm.issue("X1")
        SU = U + 8
        for d in range(10):
            a(f"v_dot2_f32_bf16 v{SU}, v{X+d}, v22, {'0' if d == 0 else 'v%d' % SU}")
            a(f"v_dot2_f32_bf16 v{SU+1}, v{X+d}, v{X+d}, {'0' if d == 0 else 'v%d' % (SU+1)}")
        for sw in ("v_permlane16_swap_b32", "v_permlane32_swap_b32"):
            for h in range(2): a(f"v_mov_b32 v{SU+2+h}, v{SU+h}")
            for h in range(2): a(f"{sw} v{SU+h}, v{SU+2+h}")
            for h in range(2): a(f"v_add_f32 v{SU+h}, v{SU+h}, v{SU+2+h}")
        a(f"""
        s_lshl_b32 s26, s54, 3
        s_add_u32 s26, s26, s19
        s_lshl_b32 s26, s26, 7
        s_add_u32 s26, s26, {ST}
        v_lshlrev_b32 v20, 3, v1
        v_cndmask_b32 v20, v21, v20, s[{S_G0}:{S_G0+1}]
        buffer_store_dwordx2 {vr(SU,2)}, v20, s[4:7], s26 offen{self.st}
        """); vm.issue("X1")

    def phaseE(self):
        a, vm, lg = self.a, self.vm, self.lg
        self.ph = "E"
        ACC, G, X, U = 32, 52, 240, 72
        sA, sW = 46, 47
        if not self.fused: self.row_offsets()
        a(f"""
        s_mul_i32 s{sA}, s54, 49152
        s_add_u32 s{sA}, s{sA}, {ACTP}
        s_mul_i32 s{sW}, s19, 245760
        s_add_u32 s{sW}, s{sW}, {WDP}
        """)
        NA = 17
        def pre(aload):
            for s in range(4):
                for ks in range(4*s, 4*s+4): aload(ks)()
                for f in self.stage_ops(sW, s, ("W", "E", s)): f()
            a(f"""
            s_mul_i32 s55, s54, 20480
            s_mul_i32 s26, s19, 2560
            s_add_u32 s55, s55, s26
            s_add_u32 s55, s55, {X1P}
            v_lshrrev_b32 v20, 5, v1
            v_lshlrev_b32 v20, 8, v20
            v_lshl_add_u32 v20, v26, 4, v20
            v_bfe_u32 v21, v1, 4, 1
            v_lshl_add_u32 v20, v21, 3, v20
            buffer_load_dwordx4 {vr(X,4)}, v2, s[4:7], s55 offen
            buffer_load_dwordx4 {vr(X+4,4)}, v2, s[4:7], s55 offen offset:1024
            buffer_load_dwordx2 {vr(X+8,2)}, v20, s[4:7], s55 offen offset:2048
            """)
            for _ in range(3): vm.issue("G")
            self.load_gate(3200, G)
        def refill(s):
            n = s + 4
            return self.stage_ops(sW, n % 8, ("W", "E", n)) if n < 12 else []
        self.gemm80(48, sA, 0, refill, 64, NA, 0, ACC, pre=pre)
        vm.wait("G")
        self.residual(ACC, G, X, U)
        a(f"""
        buffer_store_dwordx4 {vr(X,4)}, v24, s[12:15], s53 offen
        buffer_store_dwordx4 {vr(X+4,4)}, v24, s[12:15], s53 offen offset:64
        buffer_store_dwordx2 {vr(X+8,2)}, v25, s[12:15], s53 offen offset:128
        """)

    def phaseD(self, LA=3):
        a, vm, lg = self.a, self.vm, self.lg
        self.ph = "D"
        VA, VS, VO = 8, 9, 10
        AA = 0
        AX = 160
        NB = LA + 1
        AB = 184
        ACC = 32
        EXT = 12
        STT = 96
        sA, sW, sO = 46, 47, 48
        a(f"""
        s_lshl_b32 s26, s16, 3
        s_lshl_b32 s27, s3, 1
        s_add_u32 s27, s27, s26                ; rt0
        s_mul_i32 s{sA}, s27, 20480
        s_add_u32 s{sA}, s{sA}, {X1P}
        s_mul_i32 s{sO}, s27, 49152
        s_mul_i32 s26, s17, 3072
        s_add_u32 s{sO}, s{sO}, s26
        s_add_u32 s{sO}, s{sO}, {ACTP}
        s_lshl_b32 s49, s27, 10
        s_add_u32 s49, s49, {ST}
        s_mul_i32 s{sW}, s17, 245760
        s_add_u32 s{sW}, s{sW}, {WGP}
        s_mul_i32 s50, s17, 6144
        s_add_u32 s50, s50, {WXP}
        v_and_b32 v20, 15, v1
        v_bfe_u32 v21, v1, 4, 1
        v_lshrrev_b32 v22, 5, v1
        v_lshlrev_b32 v23, 8, v22
        v_lshl_add_u32 v23, v20, 4, v23
        v_mul_u32_u24 v{VA}, 20480, v21
        v_add_u32 v{VA}, v{VA}, v23
        v_mul_u32_u24 v{VO}, 49152, v21
        v_add_u32 v{VO}, v{VO}, v23
        v_lshlrev_b32 v{VS}, 10, v21
        v_lshl_add_u32 v{VS}, v22, 9, v{VS}
        v_lshl_add_u32 v{VS}, v20, 3, v{VS}
        """)
        def aload(k):
            def f():
                a(f"buffer_load_dwordx4 {ar(AA+4*k,4)}, v{VA}, s[4:7], s{sA} offen offset:{512*(k%8)}{self.ld}"); vm.issue(("A", k))
                if k % 8 == 7: a(f"s_add_u32 s{sA}, s{sA}, 4096")
            return f
        for e in range(4):
            a(f"buffer_load_dwordx2 {vr(STT+2*e,2)}, v{VS}, s[4:7], s49 offen offset:{128*e}{self.ld}"); vm.issue("ST")
        PA = 20
        NPRE = 2
        for s in range(NPRE):
            for k in range(10*s, 10*s+10): aload(k)()
            for f in self.stage_ops(sW, s, ("W", "D", s)): f()
        for e in range(6):
            if e == 4: a("s_add_u32 s50, s50, 4096")
            a(f"buffer_load_dwordx4 {ar(AX+4*e,4)}, v2, s[4:7], s50 offen offset:{1024*(e%4)}"); vm.issue("WX")
        vm.wait("ST")
        a(f"""
        v_pk_add_f32 {vr(STT,2)}, {vr(STT,2)}, {vr(STT+2,2)}
        v_pk_add_f32 {vr(STT+4,2)}, {vr(STT+4,2)}, {vr(STT+6,2)}
        v_pk_add_f32 {vr(STT,2)}, {vr(STT,2)}, {vr(STT+4,2)}
        v_mov_b32 v{STT+2}, v{STT}
        v_mov_b32 v{STT+3}, v{STT+1}
        v_permlane32_swap_b32 v{STT}, v{STT+2}
        v_permlane32_swap_b32 v{STT+1}, v{STT+3}
        v_add_f32 v{STT}, v{STT}, v{STT+2}
        v_add_f32 v{STT+1}, v{STT+1}, v{STT+3}
        v_mul_f32 v{STT}, {f2u(1.0/640)}, v{STT}
        v_mul_f32 v{STT+1}, {f2u(1.0/640)}, v{STT+1}
        v_fma_f32 v{STT+1}, -v{STT}, v{STT}, v{STT+1}
        v_max_f32 v{STT+1}, 0, v{STT+1}
        """)
        rnd_bf16(a, STT+1, STT+1)
        a(f"v_add_f32 v{STT+1}, {f2u(1e-5)}, v{STT+1}")
        rnd_bf16(a, STT+1, STT+1)
        a(f"""
        v_sqrt_f32 v{STT+1}, v{STT+1}
        v_cvt_pk_bf16_f32 v{EXT}, -v{STT}, -v{STT}
        v_cvt_pk_bf16_f32 v{EXT+1}, v{STT+1}, v{STT+1}
        v_mov_b32 v{EXT+2}, v{EXT}
        v_mov_b32 v{EXT+3}, v{EXT+1}
        v_and_b32 v{STT+1}, 0xffff0000, v{EXT+1}
        v_rcp_f32 v16, v{STT+1}
        v_mul_f32 v17, v{STT+1}, v{STT+1}
        v_mul_f32 v16, {f2u(-LOG2E)}, v16
        """)
        N = 120
        def reads(n):
            if n >= N: return []
            s = n // 10
            F = []
            if n % 10 == 0:
                F += [lambda: vm.wait(("W", "D", s)), "s_barrier"]
                nx = s + NPRE
                if nx < 12: F += self.stage_ops(sW, nx % 8, ("W", "D", nx))
            base = (s % 8) * SLOT + (n % 10) * 2048
            F += [(lambda m=m: a(self.ds_frag(ar(AB+8*(n%NB)+4*m,4), base + 1024*m, ("B", n)))) for m in range(2)]
            return F
        def epi(p):
            g = ACC + 32*(p & 1); u = g + 16; E = 104; P = 120
            F = []
            for hb in range(2):
                R = range(8*hb, 8*hb+8)
                for r in R: F.append(f"v_mul_f32 v{E+r}, v{g+r}, v16")
                for r in R: F.append(f"v_exp_f32 v{E+r}, v{E+r}")
                for r in R: F.append(f"v_mul_f32 v{u+r}, v{g+r}, v{u+r}")
                for r in R: F.append(f"v_fma_f32 v{E+r}, v{E+r}, v17, v17")
                for r in R: F.append(f"v_rcp_f32 v{E+r}, v{E+r}")
                for r in R: F.append(f"v_mul_f32 v{u+r}, v{u+r}, v{E+r}")
                for d in range(4): F.append(f"v_cvt_pk_bf16_f32 v{P+4*hb+d}, v{u+8*hb+2*d}, v{u+8*hb+2*d+1}")
                def st(hb=hb):
                    a(f"buffer_store_dwordx4 {vr(P+4*hb,4)}, v{VO}, s[4:7], s{sO} offen offset:{1024*p+512*hb}{self.st}"); vm.issue("ACT")
                F.append(st)
            return F
        for n in range(LA):
            for f in reads(n):
                f() if callable(f) else a(f)
        pend = []
        for n in range(N):
            p, k = divmod(n, 40)
            lg.wait(("B", n))
            if p == 0: vm.wait(("A", k))
            M = []
            for m in range(2):
                d = vr(ACC + 32*(p & 1) + 16*m, 16)
                M.append(f"{M32} {d}, {ar(AB+8*(n%NB)+4*m,4)}, {ar(AA+4*k,4)}, {'0' if k == 0 else d}")
            F = reads(n + LA)
            if p == 0 and k + PA < 40: F = F + [aload(k + PA)]
            if k >= 2 and pend:
                F = F + pend[:4]; pend = pend[4:]
            self.weave(M, F, lead=1)
            if k == 39:
                assert not pend
                if p == 0: vm.wait("WX")
                for m in range(2):
                    d = vr(ACC + 32*(p & 1) + 16*m, 16)
                    a(f"{M32} {d}, {ar(AX+8*p+4*m,4)}, {vr(EXT,4)}, {d}")
                pend = epi(p)
        for f in pend:
            f() if callable(f) else a(f)

def standalone(a):
    for ph in "BCDE":
        k = K1(a, fused=False)
        k.begin(f"k{ph.lower()}_kernel")
        a(f"s_mov_b32 s{S_G0}, 0xffff\ns_mov_b32 s{S_G0+1}, 0")
        getattr(k, "phase" + ph)()
        k.end()
```

```python
import sys
from gen import *
import k1
a = Asm()
k0a(a); k0b(a)
k1.standalone(a)
hdr = open("adaLN_cond__sliding_local_dilated__swiglu_ffn__prompt.s.ref").read().split("; Override launch")[0]
open(sys.argv[1] if len(sys.argv) > 1 else "k.s", "w").write(a.text(hdr))
```

```python
import sys
from gen import *
import k1
extra = int(sys.argv[2]) if len(sys.argv) > 2 else 0
a = Asm()
k0a(a); k0b(a)
k1.standalone(a)
if extra:
    a.begin("nop_kernel", 256, 256, lds=0)
    a("s_endpgm")
    a.end("nop_kernel", 16, 16)
    for _ in range(extra - 1): a.relaunch("nop_kernel", 256, 256, lds=0)
hdr = open("adaLN_cond__sliding_local_dilated__swiglu_ffn__prompt.s.ref").read().split("; Override launch")[0]
open(sys.argv[1] if len(sys.argv) > 1 else "k.s", "w").write(a.text(hdr))
```

```python
class Asm:
    def __init__(self):
        self.launch = []
        self.lines = []
        self.desc = []
        self._lab = 0
    def __call__(self, s):
        for l in s.split("\n"):
            l = l.strip()
            if l:
                self.lines.append("  " + l if not l.endswith(":") else l)
    stamps = False
    def stamp_begin(self, kidx, sb=64):
        self._k = kidx; self._n = 0; self._sb = sb
        self.stamp()
    def stamp(self):
        if not self.stamps: return
        if self._sb + 2*self._n >= 96: return
        self(f"s_memrealtime s[{self._sb+2*self._n}:{self._sb+1+2*self._n}]")
        self._n += 1
    def stamp_end(self, base):
        if not self.stamps: return
        self("s_waitcnt vmcnt(0)")
        self.stamp()
        lab = self.label("ST")
        self(f"""
        s_load_dwordx2 s[96:97], s[0:1], 88
        s_mov_b64 exec, -1
        v_cmp_eq_u32 vcc, 0, v0
        s_and_saveexec_b64 s[98:99], vcc
        s_cbranch_execz {lab}
        s_lshl_b32 s100, s2, 6
        s_add_u32 s100, s100, {base + self._k * 16384}
        v_mov_b32 v1, s100
        s_waitcnt lgkmcnt(0)
        """)
        for i in range(16):
            self(f"v_mov_b32 v2, s{self._sb+2*min(i, self._n-1)}")
            self(f"global_store_dword v1, v2, s[96:97] offset:{4*i}")
        self(f"{lab}:")
    def c(self, s):
        self.lines.append("  ; " + s)
    def label(self, base="L"):
        self._lab += 1
        return f"{base}_{self._lab}"
    def begin(self, name, grid, block, lds=0):
        self.launch.append(f"; @launch kernel={name} grid=({grid},1,1) block=({block},1,1) lds={lds}")
        self.lines += [f".globl {name}", ".p2align 8", f".type {name},@function", f"{name}:"]
    def relaunch(self, name, grid, block, lds=0):
        self.launch.append(f"; @launch kernel={name} grid=({grid},1,1) block=({block},1,1) lds={lds}")
    def end(self, name, vgpr=128, sgpr=96, agpr=0):
        if self.stamps: sgpr = 102
        acc = (vgpr + 3) // 4 * 4
        nfv = acc + agpr if agpr else vgpr
        self.desc.append(f""".p2align 6
.amdhsa_kernel {name}
  .amdhsa_next_free_vgpr {nfv}
  .amdhsa_next_free_sgpr {sgpr}
  .amdhsa_accum_offset {acc}
  .amdhsa_group_segment_fixed_size 0
  .amdhsa_kernarg_size 96
  .amdhsa_user_sgpr_count 2
  .amdhsa_user_sgpr_kernarg_segment_ptr 1
  .amdhsa_system_sgpr_workgroup_id_x 1
  .amdhsa_float_denorm_mode_32 3
.end_amdhsa_kernel""")
    def text(self, header=""):
        import hazard
        self.lines = hazard.fix(self.lines, verbose=True)
        return (header + "\n".join(self.launch) + "\n" + '.amdgcn_target "amdgcn-amd-amdhsa--gfx950"\n.text\n'
                + "\n".join(self.lines) + '\n.section .rodata,"a"\n' + "\n".join(self.desc) + "\n")
```

```python
import sys, struct
from asmlib import Asm

def f2u(x): return struct.unpack("<I", struct.pack("<f", x))[0]
def vr(i, n): return f"v[{i}:{i+n-1}]" if n > 1 else f"v{i}"
def ar(i, n): return f"a[{i}:{i+n-1}]" if n > 1 else f"a{i}"
def sr(i, n): return f"s[{i}:{i+n-1}]" if n > 1 else f"s{i}"

MB = 1 << 20
MODP = 0x0000000
MODF = 0x0010000
ST   = 0x0040000
FLG  = 0x0080000
H1P  = 0x0100000
WQP  = 0x0400000
WOP  = 0x0700000
WGP  = 0x0800000
WGJ  = 63 * 4096
WDP  = 0x0C00000
OP   = 0x0E00000
X1P  = 0x1100000
ACTP = 0x1400000
STAMP= 0x1B00000
WS_USED = 0x1C00000
OOB = 0x40000000
LOG2E = 1.4426950408889634

def srd(a, d, lo, hi, nbytes):
    a(f"s_mov_b32 s{d}, s{lo}\ns_mov_b32 s{d+1}, s{hi}\ns_mov_b32 s{d+2}, {nbytes}\ns_mov_b32 s{d+3}, 0x20000")

def udiv_v(a, dst, src, d, tmp_s, maxv):
    for sh in range(10, 24):
        m = -(-(1 << sh) // d)
        if all((x * m) >> sh == x // d for x in range(maxv)) and m * maxv < (1 << 32) and m < (1 << 24):
            break
    else:
        raise ValueError
    a(f"v_mul_u32_u24 v{dst}, {m}, v{src}")
    a(f"v_lshrrev_b32 v{dst}, {sh}, v{dst}")

def udiv_s(a, dst, src, d, maxv):
    for sh in range(8, 24):
        m = -(-(1 << sh) // d)
        if all((x * m) >> sh == x // d for x in range(maxv)):
            break
    else:
        raise ValueError
    a(f"s_mul_i32 s{dst}, s{src}, {m}")
    a(f"s_lshr_b32 s{dst}, s{dst}, {sh}")

def rnd_bf16(a, dst, src):
    a(f"v_cvt_pk_bf16_f32 v{dst}, v{src}, v{src}")
    a(f"v_and_b32 v{dst}, 0xffff0000, v{dst}")

def k0a(a):
    name = "k0a_kernel"
    a.begin(name, 256, 256, lds=1024)
    a.stamp_begin(0, 80)
    a(f"""
    s_load_dwordx4 s[4:7], s[0:1], 56
    s_load_dwordx2 s[8:9], s[0:1], 88
    s_cmp_ge_u32 s2, 252
    s_cbranch_scc1 K0A_END
    s_cmp_ge_u32 s2, 240
    s_cbranch_scc1 K0A_ZERO
    """)
    udiv_s(a, 20, 2, 60, 256)
    a(f"""
    s_mul_i32 s21, s20, 60
    s_sub_u32 s21, s2, s21                     ; cg
    s_mul_i32 s22, s20, {160*7680}
    s_lshl_b32 s23, s21, 7
    s_add_u32 s22, s22, s23
    s_mul_i32 s24, s20, 320                    ; c soffset
    v_lshrrev_b32 v1, 3, v0                    ; r0
    v_and_b32 v2, 7, v0
    v_mul_u32_u24 v3, 7680, v1
    v_lshl_add_u32 v3, v2, 4, v3               ; w voffset
    v_lshlrev_b32 v4, 1, v1                    ; c voffset
    s_waitcnt lgkmcnt(0)
    """)
    srd(a, 12, 4, 5, 1280)
    srd(a, 16, 6, 7, 640*3840*2)
    srd(a, 28, 8, 9, WS_USED)
    for i in range(5):
        a(f"buffer_load_ushort v{8+i}, v4, s[12:15], s24 offen offset:{64*i}")
    for i in range(5):
        a(f"buffer_load_dwordx4 {vr(16+4*i,4)}, v3, s[16:19], s22 offen nt")
        if i < 4: a(f"s_add_u32 s22, s22, {32*7680}")
    a("s_waitcnt vmcnt(5)")
    for i in range(5): a(f"v_lshlrev_b32 v{8+i}, 16, v{8+i}")
    for i in range(5): a(f"v_mul_f32 v{40+i}, {f2u(-LOG2E)}, v{8+i}")
    for i in range(5): a(f"v_exp_f32 v{40+i}, v{40+i}")
    a("s_nop 0")
    for i in range(5): a(f"v_add_f32 v{40+i}, 1.0, v{40+i}")
    for i in range(5): a(f"v_rcp_f32 v{40+i}, v{40+i}")
    a("s_nop 0")
    for i in range(5): a(f"v_mul_f32 v{8+i}, v{8+i}, v{40+i}")
    for i in range(5): rnd_bf16(a, 8+i, 8+i)
    for i in range(5):
        a(f"s_waitcnt vmcnt({4-i})")
        for d in range(4):
            a(f"v_lshlrev_b32 v40, 16, v{16+4*i+d}")
            a(f"v_and_b32 v41, 0xffff0000, v{16+4*i+d}")
            if i == 0:
                a(f"v_mul_f32 v{48+2*d}, v40, v8")
                a(f"v_mul_f32 v{49+2*d}, v41, v8")
            else:
                a(f"v_fmac_f32 v{48+2*d}, v40, v{8+i}")
                a(f"v_fmac_f32 v{49+2*d}, v41, v{8+i}")
    a("s_nop 1")
    for d in range(4): a(f"v_permlane32_swap_b32 v{48+d}, v{52+d}")
    for d in range(4): a(f"v_add_f32 v{48+d}, v{48+d}, v{52+d}")
    a("s_nop 1")
    for d in range(2): a(f"v_permlane16_swap_b32 v{48+d}, v{50+d}")
    for d in range(2): a(f"v_add_f32 v{48+d}, v{48+d}, v{50+d}")
    a("s_nop 1")
    for d in range(2): a(f"v_add_f32_dpp v{48+d}, v{48+d}, v{48+d} row_ror:8 row_mask:0xf bank_mask:0xf")
    a(f"""
    v_and_b32 v5, 63, v0
    v_lshrrev_b32 v6, 4, v5
    v_lshlrev_b32 v6, 3, v6                    ; *2 cols *4B
    v_lshl_add_u32 v6, v2, 5, v6               ; + c*32B
    v_lshrrev_b32 v7, 6, v0
    v_lshl_add_u32 v6, v7, 8, v6               ; + wave*256
    v_and_b32 v5, 8, v0
    v_cmp_eq_u32 vcc, 0, v5
    s_and_saveexec_b64 s[34:35], vcc
    ds_write_b64 v6, v[48:49]
    s_mov_b64 exec, s[34:35]
    s_waitcnt lgkmcnt(0)
    s_barrier
    v_cmp_gt_u32 vcc, 64, v0
    s_and_saveexec_b64 s[34:35], vcc
    s_cbranch_execz K0A_END
    v_lshlrev_b32 v6, 2, v0
    ds_read_b32 v8, v6
    ds_read_b32 v9, v6 offset:256
    ds_read_b32 v10, v6 offset:512
    ds_read_b32 v11, v6 offset:768
    s_mul_i32 s25, s20, {3840*4}
    s_lshl_b32 s26, s21, 8
    s_add_u32 s25, s25, s26
    s_add_u32 s25, s25, {MODP}
    s_waitcnt lgkmcnt(0)
    v_add_f32 v8, v8, v9
    v_add_f32 v10, v10, v11
    v_add_f32 v8, v8, v10
    buffer_store_dword v8, v6, s[28:31], s25 offen
    s_branch K0A_END
    K0A_ZERO:
    s_sub_u32 s20, s2, 240
    s_lshl_b32 s20, s20, 11
    s_add_u32 s20, s20, {FLG}
    v_lshlrev_b32 v1, 3, v0
    v_mov_b32 v2, 0
    v_mov_b32 v3, 0
    s_waitcnt lgkmcnt(0)
    s_mov_b32 s28, s8
    s_mov_b32 s29, s9
    s_mov_b32 s30, {WS_USED}
    s_mov_b32 s31, 0x20000
    buffer_store_dwordx2 v[2:3], v1, s[28:31], s20 offen
    K0A_END:
    """)
    a.stamp_end(STAMP)
    a("s_endpgm")
    a.end(name, 64, 48)

L_STG = 0
L_A1 = 45056
L_S1 = L_A1 + 2560
L_A2 = L_S1 + 2560
L_S2 = L_A2 + 1024
L_RED = L_S2 + 1024
L_UT = L_RED + 256
K0B_LDS = L_UT + 2048

def k0b(a):
    name = "k0b_kernel"
    a.begin(name, 256, 256, lds=K0B_LDS)
    a.stamp_begin(1, 80)
    a(f"""
    s_load_dwordx16 s[36:51], s[0:1], 0
    s_load_dwordx8 s[52:59], s[0:1], 64
    s_cmp_ge_u32 s2, 256
    s_cbranch_scc1 K0B_END
    v_lshrrev_b32 v1, 6, v0
    v_and_b32 v2, 63, v0                       ; lane
    v_readfirstlane_b32 s3, v1                 ; wave
    v_and_b32 v3, 7, v2                        ; l&7
    v_lshrrev_b32 v4, 3, v2                    ; l>>3
    s_waitcnt lgkmcnt(0)
    """)
    srd(a, 4, 36, 37, 2048*1280)
    srd(a, 8, 58, 59, WS_USED)
    a(f"""
    s_and_b32 s20, s2, 127
    s_lshl_b32 s20, s20, 4                     ; 2*8*(b&127)
    s_lshr_b32 s21, s2, 7
    s_add_u32 s20, s20, s21
    s_mul_i32 s20, s20, 1280
    s_lshl_b32 s21, s3, 7
    s_add_u32 s20, s20, s21                    ; + w*128
    v_mul_u32_u24 v5, 2560, v3
    v_lshl_add_u32 v5, v4, 4, v5
    buffer_load_dwordx4 v[16:19], v5, s[4:7], s20 offen
    buffer_load_dwordx4 v[20:23], v5, s[4:7], s20 offen offset:512
    v_mov_b32 v24, 0
    v_mov_b32 v25, 0
    v_mov_b32 v26, 0
    v_mov_b32 v27, 0
    s_cmp_ge_u32 s3, 2
    s_cbranch_scc1 K0B_NO3
    buffer_load_dwordx4 v[24:27], v5, s[4:7], s20 offen offset:1024
    K0B_NO3:
    """)
    a(f"""
    v_lshlrev_b32 v6, 2, v0
    s_mov_b32 s22, {MODP}
    """)
    for kq in range(4):
        for i in range(5):
            if i < 4:
                a(f"buffer_load_dword v{64+kq*7+i}, v6, s[8:11], s22 offen offset:{1024*i}")
            else:
                a(f"s_add_u32 s23, s22, 4096")
                a(f"buffer_load_dword v{64+kq*7+i}, v6, s[8:11], s23 offen")
        a(f"s_add_u32 s22, s22, {3840*4}")
    udiv_s(a, 24, 2, 48, 256)
    a(f"""
    s_mul_i32 s25, s24, 48
    s_sub_u32 s25, s2, s25
    s_mul_i32 s26, s24, 640
    s_add_u32 s27, s26, {1920*4}
    s_cmp_lt_u32 s2, 240
    s_cbranch_scc1 K0B_X1
    s_sub_u32 s26, s2, 240
    s_mul_i32 s27, s26, 320
    s_add_u32 s27, s27, {1280*4}
    s_cmp_lt_u32 s26, 8
    s_cselect_b32 s26, 0, {(3200-1280-640)*4}
    s_add_u32 s27, s27, s26
    K0B_X1:
    v_add_u32 v7, s27, v6
    s_mov_b32 s22, {MODP}
    """)
    for kq in range(4):
        a(f"buffer_load_dword v{64+kq*7+5}, v7, s[8:11], s22 offen")
        a(f"buffer_load_dword v{64+kq*7+6}, v7, s[8:11], s22 offen offset:2560")
        if kq < 3: a(f"s_add_u32 s22, s22, {3840*4}")
    a(f"""
    s_mul_i32 s28, s3, 11264
    s_cmp_ge_u32 s2, 240
    s_cbranch_scc1 K0B_NODMA
    """)
    a(f"""
    s_cmp_ge_u32 s25, 24
    s_cselect_b32 s12, s46, s44
    s_cselect_b32 s13, s47, s45
    s_cselect_b32 s29, 24, 0
    s_cselect_b32 s60, 1, 0                    ; matrix
    s_mov_b32 s14, {640*1536*2}
    s_mov_b32 s15, 0x20000
    s_sub_u32 s29, s25, s29
    s_mul_i32 s30, s24, 20
    s_mul_i32 s31, s3, 5
    s_add_u32 s30, s30, s31
    s_mul_i32 s31, s30, {8*3072}
    s_lshl_b32 s32, s29, 7
    s_add_u32 s31, s31, s32
    v_mul_u32_u24 v8, 3072, v4
    v_lshl_add_u32 v8, v3, 4, v8
    s_cmp_ge_u32 s2, 192
    s_cbranch_scc1 K0B_NOGU
    """)
    for u in range(5):
        a(f"s_add_u32 m0, s28, {u*1024}")
        a(f"buffer_load_dwordx4 v8, s[12:15], s31 offen nt lds")
        a(f"s_add_u32 s31, s31, {8*3072}")
    a("K0B_NOGU:")
    a(f"""
    s_lshl_b32 s33, s2, 2
    s_add_u32 s33, s33, s3
    s_cmp_lt_u32 s2, 120
    s_cbranch_scc1 K0B_JQ
    s_cmp_lt_u32 s2, 160
    s_cbranch_scc1 K0B_JO
    """)
    def dst80(stride_j, base):
        udiv_v(a, 12, 10, 80, None, 640)
        a(f"""
        v_mul_u32_u24 v13, 80, v12
        v_sub_u32 v13, v10, v13                ; e
        v_mul_u32_u24 v11, {stride_j}, v12
        v_lshrrev_b32 v14, 5, v13
        v_lshlrev_b32 v14, 11, v14             ; (e>>5)*2048
        v_add_u32 v11, v11, v14
        v_bfe_u32 v14, v13, 2, 1
        v_lshlrev_b32 v14, 10, v14             ; ((e>>2)&1)*1024
        v_bfe_u32 v15, v13, 3, 2
        v_lshl_add_u32 v14, v15, 6, v14        ; + ((e>>3)&3)*64
        v_and_b32 v15, 3, v13
        v_lshl_add_u32 v14, v15, 4, v14        ; + (e&3)*16
        v_and_b32 v15, 15, v13
        v_lshlrev_b32 v15, 4, v15              ; tile 4: (e-64)*16
        v_cmp_gt_u32 vcc, 64, v13
        s_nop 1
        v_cndmask_b32 v14, v15, v14, vcc
        v_add_u32 v11, v11, v14
        v_add_u32 v11, {base}, v11
        v_mov_b32 v12, 256
        """)
    a(f"""
    s_sub_u32 s33, s33, 640
    s_lshr_b32 s34, s33, 5
    s_and_b32 s35, s33, 31
    s_mul_i32 s35, s35, 6
    """)
    srd(a, 16, 48, 49, 1536*640*2)
    a(f"""
    s_mul_i32 s31, s35, {8*1280}
    s_lshl_b32 s32, s34, 7
    s_add_u32 s31, s31, s32
    v_mul_u32_u24 v9, 1280, v4
    v_lshl_add_u32 v9, v3, 4, v9
    """)
    for u in range(6):
        a(f"s_add_u32 m0, s28, {(5+u)*1024}")
        a("s_nop 0")
        a(f"buffer_load_dwordx4 v9, s[16:19], s31 offen nt lds")
        a(f"s_add_u32 s31, s31, {8*1280}")
    a(f"s_lshl_b32 s32, s34, 6\nv_add_u32 v10, s32, v2")
    dst80(245760, WDP)
    a(f"s_mov_b32 s61, 6\ns_mov_b32 s62, 5120\ns_branch K0B_JDONE")
    a(f"""
    K0B_JO:
    s_sub_u32 s33, s33, 480
    s_lshr_b32 s34, s33, 4
    s_and_b32 s35, s33, 15                     ; jj
    """)
    srd(a, 16, 40, 41, 640*640*2)
    a(f"""
    s_mul_i32 s31, s35, {40*1280}
    s_lshl_b32 s32, s34, 7
    s_add_u32 s31, s31, s32
    s_mul_i32 s35, s35, 5
    v_and_b32 v9, 3, v4
    v_lshrrev_b32 v10, 2, v4
    v_lshl_add_u32 v9, v10, 4, v9
    v_mul_u32_u24 v9, 1280, v9
    v_lshl_add_u32 v9, v3, 4, v9
    """)
    for u in range(4):
        a(f"s_add_u32 m0, s28, {(5+u)*1024}")
        a("s_nop 0")
        a(f"buffer_load_dwordx4 v9, s[16:19], s31 offen nt lds")
        a(f"s_add_u32 s31, s31, {4*1280}")
    a(f"""
    s_add_u32 s31, s31, {16*1280}
    v_mul_u32_u24 v9, 1280, v4
    v_lshl_add_u32 v9, v3, 4, v9
    s_add_u32 m0, s28, {9*1024}
    s_nop 0
    buffer_load_dwordx4 v9, s[16:19], s31 offen nt lds
    s_lshl_b32 s32, s34, 6
    v_add_u32 v10, s32, v2
    """)
    dst80(102400, WOP)
    a(f"s_mov_b32 s61, 5\ns_mov_b32 s62, 5120\ns_branch K0B_JDONE")
    a(f"""
    K0B_JQ:
    s_lshr_b32 s34, s33, 4
    s_and_b32 s35, s33, 15
    s_mul_i32 s35, s35, 5
    """)
    srd(a, 16, 38, 39, 640*1920*2)
    a(f"""
    s_mul_i32 s31, s35, {8*3840}
    s_lshl_b32 s32, s34, 7
    s_add_u32 s31, s31, s32
    v_mul_u32_u24 v9, 3840, v4
    v_lshl_add_u32 v9, v3, 4, v9
    """)
    for u in range(5):
        a(f"s_add_u32 m0, s28, {(5+u)*1024}")
        a("s_nop 0")
        a(f"buffer_load_dwordx4 v9, s[16:19], s31 offen nt lds")
        a(f"s_add_u32 s31, s31, {8*3840}")
    udiv_s(a, 63, 34, 10, 32)
    a(f"""
    s_mul_i32 s32, s63, 10
    s_sub_u32 s32, s34, s32
    s_lshl_b32 s32, s32, 6
    v_add_u32 v10, s32, v2                     ; nn
    """)
    udiv_v(a, 12, 10, 40, None, 640)
    a(f"""
    v_mul_u32_u24 v13, 40, v12
    v_sub_u32 v13, v10, v13                    ; e
    v_mul_u32_u24 v11, 153600, v12
    s_cmp_eq_u32 s63, 1
    s_cselect_b32 s64, 2048, 0
    s_cselect_b32 s65, 128, 0
    s_add_u32 s65, s65, 4096
    s_mov_b32 s66, 256
    s_cmp_eq_u32 s63, 2
    s_cselect_b32 s64, 5120, s64
    s_cselect_b32 s65, 7168, s65
    s_cselect_b32 s66, 128, s66
    v_lshrrev_b32 v14, 4, v13
    v_lshlrev_b32 v14, 10, v14
    v_add_u32 v14, s64, v14
    v_mov_b32 v15, s65
    v_cmp_gt_u32 vcc, 32, v13
    v_mov_b32 v12, s66
    v_mov_b32 v10, 256
    v_cndmask_b32 v14, v15, v14, vcc
    v_cndmask_b32 v12, v12, v10, vcc           ; g stride
    v_and_b32 v15, 15, v13
    v_lshl_add_u32 v14, v15, 4, v14
    v_add_u32 v11, v11, v14
    v_add_u32 v11, {WQP}, v11
    s_mov_b32 s61, 5
    s_mov_b32 s62, 7680
    K0B_JDONE:
    K0B_NODMA:
    """)
    a.stamp()
    a("s_waitcnt vmcnt(0)")
    a.stamp()
    for d in range(12):
        a(f"v_lshlrev_b32 v{96+2*d}, 16, v{16+d}")
        a(f"v_and_b32 v{97+2*d}, 0xffff0000, v{16+d}")
    def lanesum(r, t):
        a(f"""
        s_nop 1
        v_add_f32_dpp v{r}, v{r}, v{r} row_ror:8 row_mask:0xf bank_mask:0xf
        v_mov_b32 v{t}, v{r}
        s_nop 1
        v_permlane16_swap_b32 v{r}, v{t}
        v_add_f32 v{r}, v{r}, v{t}
        v_mov_b32 v{t}, v{r}
        s_nop 1
        v_permlane32_swap_b32 v{r}, v{t}
        v_add_f32 v{r}, v{r}, v{t}
        """)
    a("v_add_f32 v28, v96, v97")
    for d in range(2, 24): a(f"v_add_f32 v28, v28, v{96+d}")
    lanesum(28, 29)
    a(f"""
    v_lshlrev_b32 v30, 2, v3
    s_lshl_b32 s20, s3, 5
    v_add_u32 v31, s20, v30
    ds_write_b32 v31, v28 offset:{L_RED}
    """)
    for i in range(7):
        a(f"v_add_f32 v{64+i}, v{64+i}, v{71+i}")
        a(f"v_add_f32 v{78+i}, v{78+i}, v{85+i}")
    for i in range(7): a(f"v_add_f32 v{64+i}, v{64+i}, v{78+i}")
    for i in range(7): rnd_bf16(a, 64+i, 64+i)
    for i in range(7):
        a(f"v_add_f32 v{71+i}, 1.0, v{64+i}")
    for i in range(7): rnd_bf16(a, 71+i, 71+i)
    a(f"""
    ds_write_b32 v6, v64 offset:{L_S1}
    ds_write_b32 v6, v65 offset:{L_S1+1024}
    ds_write_b32 v6, v74 offset:{L_A1+(768-640)*4}
    ds_write_b32 v6, v75 offset:{L_A1+(1024-640)*4}
    v_cmp_gt_u32 vcc, 128, v0
    v_mov_b32 v78, {L_A1-128*4}
    v_mov_b32 v79, {L_S1+2048}
    v_cndmask_b32 v78, v78, v79, vcc
    v_cndmask_b32 v80, v73, v66, vcc
    v_add_u32 v78, v78, v6
    ds_write_b32 v78, v80
    ds_write_b32 v6, v69 offset:{L_S2}
    ds_write_b32 v6, v77 offset:{L_A2}
    s_cmp_lt_u32 s2, 240
    s_cbranch_scc1 K0B_NOF
    v_cmp_gt_u32 vcc, 80, v0
    s_and_saveexec_b64 s[68:69], vcc
    s_cbranch_execz K0B_NOF2
    s_mov_b32 s22, {MODF}
    buffer_store_dword v69, v7, s[8:11], s22 offen
    K0B_NOF2:
    s_mov_b64 exec, s[68:69]
    K0B_NOF:
    s_waitcnt lgkmcnt(0)
    s_barrier
    ds_read_b32 v32, v30 offset:{L_RED}
    ds_read_b32 v33, v30 offset:{L_RED+32}
    ds_read_b32 v34, v30 offset:{L_RED+64}
    ds_read_b32 v35, v30 offset:{L_RED+96}
    s_waitcnt lgkmcnt(0)
    v_add_f32 v32, v32, v33
    v_add_f32 v34, v34, v35
    v_add_f32 v32, v32, v34
    v_mul_f32 v32, {f2u(1.0/640)}, v32         ; mean
    """)
    a("v_sub_f32 v29, v96, v32\nv_mul_f32 v28, v29, v29")
    for d in range(1, 16):
        a(f"v_sub_f32 v29, v{96+d}, v32\nv_fmac_f32 v28, v29, v29")
    a("s_cmp_ge_u32 s3, 2\ns_cbranch_scc1 K0B_NO3B")
    for d in range(16, 24):
        a(f"v_sub_f32 v29, v{96+d}, v32\nv_fmac_f32 v28, v29, v29")
    a("K0B_NO3B:")
    lanesum(28, 29)
    a(f"""
    ds_write_b32 v31, v28 offset:{L_RED+128}
    s_waitcnt lgkmcnt(0)
    s_barrier
    ds_read_b32 v36, v30 offset:{L_RED+128}
    ds_read_b32 v33, v30 offset:{L_RED+128+32}
    ds_read_b32 v34, v30 offset:{L_RED+128+64}
    ds_read_b32 v35, v30 offset:{L_RED+128+96}
    """)
    a(f"""
    s_lshl_b32 s20, s3, 8
    v_lshl_add_u32 v37, v4, 5, s20
    """)
    for q in range(3):
        a(f"ds_read_b128 {vr(128+16*q,4)}, v37 offset:{L_A1+1024*q}")
        a(f"ds_read_b128 {vr(132+16*q,4)}, v37 offset:{L_A1+1024*q+16}")
        a(f"ds_read_b128 {vr(136+16*q,4)}, v37 offset:{L_S1+1024*q}")
        a(f"ds_read_b128 {vr(140+16*q,4)}, v37 offset:{L_S1+1024*q+16}")
    a(f"""
    s_waitcnt lgkmcnt(12)
    v_add_f32 v36, v36, v33
    v_add_f32 v34, v34, v35
    v_add_f32 v36, v36, v34
    v_mul_f32 v36, {f2u(1.0/640)}, v36         ; var
    """)
    rnd_bf16(a, 36, 36)
    a(f"v_add_f32 v36, {f2u(1e-5)}, v36")
    rnd_bf16(a, 36, 36)
    a("v_sqrt_f32 v36, v36\ns_nop 0")
    rnd_bf16(a, 36, 36)
    a("v_rcp_f32 v36, v36")
    rnd_bf16(a, 32, 32)
    for d in range(24): a(f"v_sub_f32 v{96+d}, v{96+d}, v32")
    for d in range(24): a(f"v_mul_f32 v{96+d}, v{96+d}, v36")
    a("s_waitcnt lgkmcnt(0)")
    for q in range(3):
        for e in range(8):
            a(f"v_fma_f32 v{96+8*q+e}, v{96+8*q+e}, v{128+16*q+e}, v{136+16*q+e}")
        for e in range(4):
            a(f"v_cvt_pk_bf16_f32 v{16+4*q+e}, v{96+8*q+2*e}, v{97+8*q+2*e}")
    a(f"""
    s_lshr_b32 s20, s2, 1
    s_mul_i32 s20, s20, 20480
    s_and_b32 s21, s2, 1
    s_lshl_b32 s21, s21, 7
    s_add_u32 s20, s20, s21
    s_lshl_b32 s21, s3, 11
    s_add_u32 s20, s20, s21
    s_add_u32 s20, s20, {H1P}
    v_lshlrev_b32 v38, 8, v4
    v_lshl_add_u32 v38, v3, 4, v38
    buffer_store_dwordx4 v[16:19], v38, s[8:11], s20 offen
    s_add_u32 s20, s20, 8192
    buffer_store_dwordx4 v[20:23], v38, s[8:11], s20 offen
    s_add_u32 s20, s20, 8192
    s_cmp_ge_u32 s3, 2
    s_cbranch_scc1 K0B_NO3C
    buffer_store_dwordx4 v[24:27], v38, s[8:11], s20 offen
    K0B_NO3C:
    s_cmp_ge_u32 s2, 240
    s_cbranch_scc1 K0B_END
    """)
    a(f"""
    v_bfe_u32 v40, v2, 2, 2
    v_lshlrev_b32 v40, 7, v40
    v_lshrrev_b32 v41, 4, v2
    v_lshl_add_u32 v40, v41, 5, v40
    v_and_b32 v41, 3, v2
    v_lshl_add_u32 v40, v41, 3, v40
    v_add_u32 v40, s28, v40
    """)
    TR = 172
    for u in range(11):
        a(f"ds_read_b64_tr_b16 {vr(TR+4*u,2)}, v40 offset:{u*1024}")
        a(f"ds_read_b64_tr_b16 {vr(TR+2+4*u,2)}, v40 offset:{u*1024+512}")
        if u == 6: a("s_waitcnt lgkmcnt(8)")
    a("s_waitcnt lgkmcnt(0)")
    for u in range(6):
        if u == 5:
            a("s_cmp_lt_u32 s61, 6\ns_cbranch_scc1 K0B_NO6")
        a(f"""
        s_add_u32 s20, s35, {u}
        s_lshr_b32 s21, s20, 2
        s_mul_i32 s21, s21, s62
        s_and_b32 s20, s20, 3
        v_mad_u32_u24 v42, v12, s20, v11
        buffer_store_dwordx4 {vr(TR+20+4*u,4)}, v42, s[8:11], s21 offen
        """)
    a("K0B_NO6:")
    a("s_cmp_ge_u32 s2, 192\ns_cbranch_scc1 K0B_END")
    a(f"s_lshl_b32 s32, s29, 6\nv_add_u32 v10, s32, v2")
    udiv_v(a, 12, 10, 96, None, 1536)
    a(f"""
    v_mul_u32_u24 v13, 96, v12
    v_sub_u32 v13, v10, v13                    ; e
    v_lshrrev_b32 v14, 5, v13                  ; p
    v_mad_u32_u24 v53, v12, 3, v14             ; 3j+p
    v_mul_u32_u24 v11, {21*4096}, v53
    v_bfe_u32 v14, v13, 2, 1
    v_lshlrev_b32 v14, 10, v14                 ; tile (e>>2)&1
    v_bfe_u32 v15, v13, 3, 2
    v_lshl_add_u32 v14, v15, 6, v14
    v_and_b32 v15, 3, v13
    v_lshl_add_u32 v14, v15, 4, v14
    v_add_u32 v11, v11, v14
    s_lshl_b32 s20, s60, 11
    s_add_u32 s20, s20, {WGP}
    v_add_u32 v11, s20, v11
    s_mul_i32 s20, s3, 160
    v_mov_b32 v43, s20
    v_mov_b32 v44, 0                           ; u
    v_mov_b32 v45, 0                           ; t
    v_mov_b32 v46, 0x3f803f80
    """)
    AB = [64, 80, 128, 144, 216]
    for u in range(5):
        a(f"ds_read_b128 {vr(AB[u],4)}, v43 offset:{L_A2+32*u}")
        a(f"ds_read_b128 {vr(AB[u]+4,4)}, v43 offset:{L_A2+32*u+16}")
        a(f"ds_read_b128 {vr(AB[u]+8,4)}, v43 offset:{L_S2+32*u}")
        a(f"ds_read_b128 {vr(AB[u]+12,4)}, v43 offset:{L_S2+32*u+16}")
        if u == 2: a("s_waitcnt lgkmcnt(4)")
    a("s_waitcnt lgkmcnt(0)")
    for u in range(5):
        w = TR + 4*u
        A = AB[u]
        for d in range(4):
            a(f"v_lshlrev_b32 v{96+2*d}, 16, v{w+d}")
            a(f"v_and_b32 v{97+2*d}, 0xffff0000, v{w+d}")
        for e in range(8): a(f"v_fmac_f32 v45, v{96+e}, v{A+8+e}")
        for e in range(8): a(f"v_mul_f32 v{96+e}, v{96+e}, v{A+e}")
        for d in range(4): a(f"v_cvt_pk_bf16_f32 v{104+4*u+d}, v{96+2*d}, v{97+2*d}")
        for d in range(4): a(f"v_dot2_f32_bf16 v44, v{104+4*u+d}, v46, v44")
        a(f"""
        s_add_u32 s20, s30, {u}
        s_lshr_b32 s21, s20, 2
        s_lshl_b32 s21, s21, 12
        s_and_b32 s20, s20, 3
        s_lshl_b32 s20, s20, 8
        s_add_u32 s21, s21, s20
        buffer_store_dwordx4 {vr(104+4*u,4)}, v11, s[8:11], s21 offen
        """)
    a(f"""
    s_lshl_b32 s20, s3, 9
    v_lshl_add_u32 v47, v2, 2, s20
    ds_write_b32 v47, v44 offset:{L_UT}
    ds_write_b32 v47, v45 offset:{L_UT+256}
    s_waitcnt lgkmcnt(0)
    s_barrier
    s_cmp_lg_u32 s3, 0
    s_cbranch_scc1 K0B_END
    """)
    for w in range(4):
        a(f"ds_read_b32 v{56+w}, v6 offset:{L_UT+512*w}")
        a(f"ds_read_b32 v{60+w}, v6 offset:{L_UT+512*w+256}")
    a(f"""
    s_lshl_b32 s20, s24, 8
    s_add_u32 s20, s20, {20*4096}
    s_waitcnt lgkmcnt(0)
    v_add_f32 v56, v56, v57
    v_add_f32 v58, v58, v59
    v_add_f32 v60, v60, v61
    v_add_f32 v62, v62, v63
    v_add_f32 v56, v56, v58
    v_add_f32 v60, v60, v62
    """)
    rnd_bf16(a, 57, 56); rnd_bf16(a, 61, 60)
    a(f"""
    v_sub_f32 v58, v56, v57
    v_sub_f32 v62, v60, v61
    v_cvt_pk_bf16_f32 v56, v57, v58
    v_cvt_pk_bf16_f32 v57, v61, v62
    v_mov_b32 v58, 0
    v_mov_b32 v59, 0
    buffer_store_dwordx4 v[56:59], v11, s[8:11], s20 offen
    K0B_END:
    """)
    a.stamp()
    a.stamp_end(STAMP)
    a("s_endpgm")
    a.end(name, 240, 80)
```

```python
from gen import *

class Cnt:
    def __init__(self, a, name, maxv):
        self.a, self.name, self.maxv, self.ops, self.done = a, name, maxv, [], 0
    def issue(self, tag): self.ops.append(tag)
    def wait_str(self, tag):
        idx = max((i for i, t in enumerate(self.ops) if t == tag), default=None)
        assert idx is not None, tag
        if idx < self.done: return None
        n = min(len(self.ops) - 1 - idx, self.maxv)
        self.done = max(self.done, len(self.ops) - n)
        return f"s_waitcnt {self.name}({n})"
    def wait(self, tag):
        s = self.wait_str(tag)
        if s: self.a(s)
    def wait_all(self):
        self.done = len(self.ops); self.a(f"s_waitcnt {self.name}(0)")

M16 = "v_mfma_f32_16x16x32_bf16"
M32 = "v_mfma_f32_32x32x16_bf16"
SLOT = 20480
NEG = f2u(-1e30)

S_WV = 3
S_WS, S_X, S_OUT = 4, 8, 12
S_I, S_J, S_I2, S_J2 = 16, 17, 18, 19
S_SEL, S_G0 = 40, 42
V_TID, V_LANE, V_L16, V_L16B, V_L16C, V_W0, V_W1 = 0, 1, 2, 3, 4, 5, 6

class K1:
    def __init__(self, a, fused=False):
        self.a = a; self.fused = fused
        self.ld = " sc1" if fused else ""
        self.st = " sc0 sc1" if fused else ""
    def begin(self, name):
        a = self.a
        self.name = name
        self.vm = Cnt(a, "vmcnt", 63); self.lg = Cnt(a, "lgkmcnt", 15)
        a.begin(name, 256, 256, lds=163840)
        a.stamp_begin(self.kidx)
        a(f"""
        s_load_dwordx2 s[20:21], s[0:1], 0
        s_load_dwordx2 s[22:23], s[0:1], 72
        s_load_dwordx2 s[24:25], s[0:1], 88
        s_cmp_ge_u32 s2, 256
        s_cbranch_scc1 {name}_END
        v_lshrrev_b32 v2, 6, v0
        v_and_b32 v1, 63, v0
        v_readfirstlane_b32 s3, v2
        v_lshlrev_b32 v2, 4, v1
        v_add_u32 v3, 0x10000, v2
        v_add_u32 v4, 0x20000, v2
        s_and_b32 s26, s2, 7
        s_lshr_b32 s27, s2, 3
        s_lshr_b32 s28, s27, 3
        s_and_b32 s19, s27, 7
        s_lshl_b32 s18, s26, 2
        s_add_u32 s18, s18, s28
        s_lshr_b32 s16, s26, 1
        s_lshl_b32 s16, s16, 2
        s_add_u32 s16, s16, s28
        s_and_b32 s17, s26, 1
        s_lshl_b32 s17, s17, 3
        s_add_u32 s17, s17, s19
        s_lshl_b32 s26, s3, 12
        v_add_u32 v5, s26, v2
        s_lshl_b32 s27, s3, 10
        s_add_u32 s27, s27, 16384
        v_add_u32 v6, s27, v2
        s_mov_b32 s44, s26
        s_mov_b32 s45, s27
        s_waitcnt lgkmcnt(0)
        """)
        srd(a, S_WS, 24, 25, WS_USED)
        srd(a, S_X, 20, 21, 2048*1280)
        srd(a, S_OUT, 22, 23, 2048*1280)
    def end(self):
        self.a.stamp()
        self.a.stamp_end(STAMP)
        self.a(f"{self.name}_END:\ns_endpgm")
        self.a.end(self.name, 256, 96, agpr=256)

    def lds(self, off):
        return (V_L16, V_L16B, V_L16C)[off >> 16], off & 0xffff
    def ds_frag(self, dst, off, tag):
        v, imm = self.lds(off)
        self.lg.issue(tag)
        return f"ds_read_b128 {dst}, v{v} offset:{imm}"
    def stage_ops(self, sreg, slot, tag):
        a = self.a; ops = []
        def mk(i):
            def f():
                if i == 0: a(f"s_add_u32 m0, s44, {slot*SLOT}")
                if i == 4: a(f"s_add_u32 m0, s45, {slot*SLOT}")
                if i < 4: a(f"buffer_load_dwordx4 v{V_W0}, s[4:7], s{sreg} offen offset:{1024*i} lds")
                else:
                    a(f"buffer_load_dwordx4 v{V_W1}, s[4:7], s{sreg} offen lds")
                    a(f"s_add_u32 s{sreg}, s{sreg}, {SLOT}")
                self.vm.issue(tag)
            return f
        return [mk(i) for i in range(5)]

    def weave(self, M, F, lead=1):
        a = self.a
        n = len(M); slots = max(n - lead + 1, 1); fi = 0
        for k, m in enumerate(M):
            a(m)
            if k + 1 >= lead:
                upto = len(F) * (k + 2 - lead) // slots
                while fi < upto:
                    f = F[fi]; fi += 1
                    if callable(f): f()
                    elif f: a(f)
        while fi < len(F):
            f = F[fi]; fi += 1
            if callable(f): f()
            elif f: a(f)

    def phaseB(self, P=4):
        a, vm, lg = self.a, self.vm, self.lg
        NS = 7
        VA1, VH, VB0, VB1 = 8, 9, 10, 11
        BIAS = 12
        ACC = 32; HAC = 96
        AB = 0
        AA = 64
        AH = AA + 8 * (P + 1)
        sA, sH, sB = 46, 47, 48
        a(f"""
        s_lshl_b32 s26, s16, 3
        s_lshl_b32 s27, s3, 1
        s_add_u32 s27, s27, s26
        s_mul_i32 s{sA}, s27, 20480
        s_add_u32 s{sA}, s{sA}, {H1P}
        s_mov_b32 s49, s27
        s_max_u32 s26, s26, 1
        s_sub_u32 s26, s26, 1
        s_mul_i32 s{sH}, s26, 20480
        s_lshl_b32 s26, s3, 10
        s_add_u32 s{sH}, s{sH}, s26
        s_add_u32 s{sH}, s{sH}, {H1P}
        s_mul_i32 s{sB}, s17, 153600
        s_add_u32 s{sB}, s{sB}, {WQP}
        s_lshl_b32 s50, s3, 11
        v_add_u32 v{VA1}, 20480, v2
        v_and_b32 v20, 8, v1
        v_cmp_eq_u32 vcc, 0, v20
        v_mov_b32 v21, {OOB}
        v_add_u32 v{VB0}, s50, v2
        v_cndmask_b32 v{VH}, v2, v21, vcc
        v_lshrrev_b32 v22, 4, v1
        v_and_b32 v23, 7, v1
        v_lshlrev_b32 v22, 7, v22
        v_lshl_add_u32 v22, v23, 4, v22
        v_add_u32 v22, 6144, v22
        v_cndmask_b32 v22, v21, v22, vcc
        s_cmp_eq_u32 s3, 3
        s_cselect_b64 vcc, -1, 0
        v_cndmask_b32 v{VB1}, v{VB0}, v22, vcc
        """)
        def group(ks):
            ops = []
            def halo():
                m = ks // 4
                a(f"buffer_load_dwordx4 {ar(AH+4*m,4)}, v{VH}, s[4:7], s{sH} offen")
                a(f"s_add_u32 s{sH}, s{sH}, 4096"); vm.issue(("H", m))
            def a0():
                a(f"buffer_load_dwordx4 {ar(AA+8*(ks%(P+1)),4)}, v2, s[4:7], s{sA} offen"); vm.issue(("A", ks))
            def a1():
                a(f"buffer_load_dwordx4 {ar(AA+8*(ks%(P+1))+4,4)}, v{VA1}, s[4:7], s{sA} offen"); vm.issue(("A", ks))
                a(f"s_add_u32 s{sA}, s{sA}, 1024")
            def d0():
                a(f"s_add_u32 m0, s50, {(ks%NS)*8192}")
                a(f"buffer_load_dwordx4 v{VB0}, s[4:7], s{sB} offen lds"); vm.issue(("B", ks))
            def d1():
                a(f"buffer_load_dwordx4 v{VB1}, s[4:7], s{sB} offen offset:1024 lds"); vm.issue(("B", ks))
                a(f"s_add_u32 s{sB}, s{sB}, 7680")
            if ks % 4 == 0: ops.append(halo)
            return ops + [a0, a1, d0, d1]
        for ks in range(P):
            for f in group(ks): f()
        a(f"""
        s_mov_b32 s{S_SEL}, 0
        s_mov_b32 s{S_SEL+1}, 0x00ff00ff
        s_mov_b32 s{S_G0}, 0xffff
        s_mov_b32 s{S_G0+1}, 0
        v_and_b32 v20, 15, v1
        v_lshrrev_b32 v21, 4, v1
        v_lshlrev_b32 v21, 2, v21
        v_sub_u32 v20, v20, v21
        v_cndmask_b32 v21, 0, 16, s[{S_SEL}:{S_SEL+1}]
        v_add_u32 v20, v20, v21
        v_mov_b32 v22, {NEG}
        """)
        for r in range(4):
            a(f"v_subrev_u32 v21, {r}, v20")
            a(f"v_cmp_lt_u32 vcc, 7, v21")
            a(f"v_cndmask_b32 v{BIAS+r}, 0, v22, vcc")
        a(f"""
        s_and_b32 s26, s49, 63
        s_cmp_eq_u32 s26, 0
        s_cselect_b64 vcc, s[{S_SEL}:{S_SEL+1}], 0
        """)
        for r in range(4):
            a(f"v_cndmask_b32 v{BIAS+4+r}, v{BIAS+r}, v22, vcc")
        def reads(ks):
            return [(lambda t=t: a(self.ds_frag(ar(AB+32*(ks&1)+4*t,4), (ks%NS)*8192 + t*1024, ("B", ks)))) for t in range(8)]
        vm.wait(("B", 0)); a("s_barrier")
        a.stamp()
        for f in reads(0): f()
        for ks in range(20):
            lg.wait(("B", ks))
            M = []
            for t in range(8):
                for rt in range(2):
                    d = vr(ACC+32*rt+4*t, 4); A = ar(AA+8*(ks%(P+1))+4*rt, 4); B = ar(AB+32*(ks&1)+4*t, 4)
                    c = "0" if ks == 0 else d
                    M.append(f"{M16} {d}, {B}, {A}, {c}" if t < 5 else f"{M16} {d}, {A}, {B}, {c}")
            F = []
            if ks + P < 20: F += group(ks + P)
            F += self.extraB(ks)
            if ks + 1 < 20:
                F += [lambda ks=ks: vm.wait(("B", ks+1)), "s_barrier"] + reads(ks + 1)
            self.weave(M, F, lead=2)
            m = ks // 4
            lab = a.label("BH")
            a(f"s_cmp_lg_u32 s3, {ks%4}\ns_cbranch_scc1 {lab}")
            for t in range(2, 8):
                d = vr(HAC+4*(t-2), 4); A = ar(AH+4*m, 4); B = ar(AB+32*(ks&1)+4*t, 4)
                c = "0" if m == 0 else d
                a(f"{M16} {d}, {B}, {A}, {c}" if t < 5 else f"{M16} {d}, {A}, {B}, {c}")
            a(f"{lab}:")
        self.drain()
        a.stamp()
        KG = 120
        VG = 138
        QF = 156
        S = 172
        T = lambda rt, t: ACC + 32*rt + 4*t
        def pk(dst, src):
            a(f"v_cvt_pk_bf16_f32 v{dst}, v{src}, v{src+1}")
            a(f"v_cvt_pk_bf16_f32 v{dst+1}, v{src+2}, v{src+3}")
        XH = 0; XK = 18432
        lab = a.label("BX")
        a(f"""
        s_mul_i32 s26, s3, 6144
        s_sub_u32 s26, s26, 6144
        v_add_u32 v20, s26, v2
        s_cmp_eq_u32 s3, 0
        s_cbranch_scc1 {lab}
        """)
        for t in range(6): a(f"ds_write_b128 v20, {vr(HAC+4*t,4)} offset:{XH+1024*t}")
        a(f"{lab}:")
        for rt in (1, 0):
            kg = KG + 6 + 6*rt; q = QF + 8*rt
            pk(kg, T(rt, 2)); pk(kg+2, T(rt, 3)); pk(q+6, T(rt, 4))
            a(f"v_mov_b32 v{kg+4}, 0\nv_mov_b32 v{kg+5}, 0")
            for t in range(3): pk(VG + 6*t + 2 + 2*rt, T(rt, 5+t))
            a(f"v_permlane32_swap_b32 v{q+6}, v{kg+4}\nv_permlane32_swap_b32 v{q+7}, v{kg+5}")
            if rt == 1:
                a(f"""
                s_mul_i32 s26, s3, 3072
                v_add_u32 v21, s26, v2
                v_lshrrev_b32 v22, 1, v2
                v_add_u32 v22, s26, v22
                ds_write_b128 v21, {vr(kg,4)} offset:{XK}
                ds_write_b64 v22, {vr(kg+4,2)} offset:{XK+1024}
                """)
                for t in range(3): a(f"ds_write_b64 v22, {vr(VG+6*t+4,2)} offset:{XK+1536+512*t}")
            pk(q, T(rt, 0)); pk(q+4, T(rt, 1))
            for e in range(2):
                a(f"v_cndmask_b32 v{q+2+e}, 0, v{q+4+e}, s[{S_G0}:{S_G0+1}]")
            for e in range(2):
                a(f"v_cndmask_b32 v{q+4+e}, v{q+4+e}, 0, s[{S_G0}:{S_G0+1}]")
        a("s_waitcnt lgkmcnt(0)\ns_barrier")
        lab0 = a.label("BW0"); lab1 = a.label("BW1")
        a(f"s_cmp_eq_u32 s3, 0\ns_cbranch_scc1 {lab0}")
        a(f"ds_read_b128 {vr(KG,4)}, v21 offset:{XK-3072}")
        a(f"ds_read_b64 {vr(KG+4,2)}, v22 offset:{XK+1024-3072}")
        for t in range(3): a(f"ds_read_b64 {vr(VG+6*t,2)}, v22 offset:{XK+1536+512*t-3072}")
        a(f"s_branch {lab1}\n{lab0}:")
        HT = 32
        for w in range(3):
            for t in range(6):
                dst = HT + 24*w + 4*t if w < 2 else 200 + 4*t
                a(f"ds_read_b128 {vr(dst,4)}, v2 offset:{XH+6144*w+1024*t}")
            if w == 1: a("s_waitcnt lgkmcnt(6)")
        a(f"{lab1}:")
        cs = 51
        a(f"s_mov_b32 s{cs}, {f2u(20**-0.5 * LOG2E)}")
        OUT = 224
        def unit(rt):
            kp = KG + 6*rt; kc = KG + 6 + 6*rt; q = QF + 8*rt
            bias = BIAS + (4 if rt == 0 else 0)
            Z = S + 16; MX = S + 24; TM = S + 26
            for h in range(2):
                a(f"{M16} {vr(S+8*h,4)}, {vr(kp+2*h,4)}, {vr(q+4*h,4)}, 0")
                a(f"{M16} {vr(S+8*h+4,4)}, {vr(kc+2*h,4)}, {vr(q+4*h,4)}, 0")
            for h in range(2):
                for r in range(4): a(f"v_cndmask_b32 v{Z+4*h+r}, v{S+8*h+4+r}, v{S+8*h+r}, s[{S_SEL}:{S_SEL+1}]")
            for h in range(2):
                for r in range(4): a(f"v_fma_f32 v{Z+4*h+r}, v{Z+4*h+r}, s{cs}, v{bias+r}")
            for h in range(2): a(f"v_max3_f32 v{MX+h}, v{Z+4*h}, v{Z+4*h+1}, v{Z+4*h+2}")
            for h in range(2): a(f"v_max_f32 v{MX+h}, v{MX+h}, v{Z+4*h+3}")
            def xl(op):
                for sw in ("v_permlane16_swap_b32", "v_permlane32_swap_b32"):
                    for h in range(2): a(f"v_mov_b32 v{TM+h}, v{MX+h}")
                    for h in range(2): a(f"{sw} v{MX+h}, v{TM+h}")
                    for h in range(2): a(f"{op} v{MX+h}, v{MX+h}, v{TM+h}")
            xl("v_max_f32")
            for h in range(2):
                for r in range(4): a(f"v_sub_f32 v{Z+4*h+r}, v{Z+4*h+r}, v{MX+h}")
            for h in range(2):
                for r in range(4): a(f"v_exp_f32 v{Z+4*h+r}, v{Z+4*h+r}")
            for h in range(2): a(f"v_add_f32 v{MX+h}, v{Z+4*h}, v{Z+4*h+1}")
            for h in range(2): a(f"v_add_f32 v{TM+h}, v{Z+4*h+2}, v{Z+4*h+3}")
            for h in range(2): a(f"v_add_f32 v{MX+h}, v{MX+h}, v{TM+h}")
            xl("v_add_f32")
            for h in range(2): a(f"v_rcp_f32 v{MX+h}, v{MX+h}")
            for h in range(2):
                for r in range(4): a(f"v_mul_f32 v{Z+4*h+r}, v{Z+4*h+r}, v{MX+h}")
            for h in range(2): pk(S+4*h+2, Z+4*h)
            for h in range(2):
                for e in range(2): a(f"v_cndmask_b32 v{S+4*h+e}, 0, v{S+4*h+2+e}, s[{S_SEL}:{S_SEL+1}]")
                for e in range(2): a(f"v_cndmask_b32 v{S+4*h+2+e}, v{S+4*h+2+e}, 0, s[{S_SEL}:{S_SEL+1}]")
            O = S + 8
            a(f"{M16} {vr(O,4)}, {vr(VG+2*rt,4)}, {vr(S,4)}, 0")
            a(f"{M16} {vr(O+4,4)}, {vr(VG+6+2*rt,4)}, {vr(S,4)}, 0")
            a(f"{M16} {vr(O+8,4)}, {vr(VG+6+2*rt,4)}, {vr(S+4,4)}, 0")
            a(f"{M16} {vr(O+12,4)}, {vr(VG+12+2*rt,4)}, {vr(S+4,4)}, 0")
            pk(OUT+4*rt, O)
            for r in range(4): a(f"v_cndmask_b32 v{O+4+r}, v{O+8+r}, v{O+4+r}, s[{S_G0}:{S_G0+1}]")
            pk(OUT+4*rt+2, O+4)
            pk(OUT+8+2*rt, O+12)
        a(f"""
        s_mul_i32 s52, s49, 20480
        s_mul_i32 s26, s17, 1280
        s_add_u32 s52, s52, s26
        s_add_u32 s52, s52, {OP}
        """)
        unit(1)
        a(f"buffer_store_dwordx4 {vr(OUT+4,4)}, v{VA1}, s[4:7], s52 offen{self.st}"); vm.issue("O")
        a("s_waitcnt lgkmcnt(0)")
        lab = a.label("BW2")
        a(f"s_cmp_lg_u32 s3, 0\ns_cbranch_scc1 {lab}")
        for e in range(0, 24, 2):
            a(f"v_pk_add_f32 {vr(HAC+e,2)}, {vr(HAC+e,2)}, {vr(HT+e,2)}")
            a(f"v_pk_add_f32 {vr(HT+24+e,2)}, {vr(HT+24+e,2)}, {vr(200+e,2)}")
        for e in range(0, 24, 2):
            a(f"v_pk_add_f32 {vr(HAC+e,2)}, {vr(HAC+e,2)}, {vr(HT+24+e,2)}")
        pk(KG, HAC); pk(KG+2, HAC+4); pk(HT, HAC+8)
        a(f"v_mov_b32 v{KG+4}, 0\nv_mov_b32 v{KG+5}, 0")
        for t in range(3): pk(VG+6*t, HAC+12+4*t)
        a(f"v_permlane32_swap_b32 v{HT}, v{KG+4}\nv_permlane32_swap_b32 v{HT+1}, v{KG+5}")
        a(f"{lab}:")
        unit(0)
        a(f"buffer_store_dwordx4 {vr(OUT,4)}, v2, s[4:7], s52 offen{self.st}"); vm.issue("O")
        a(f"""
        v_permlane16_swap_b32 v{OUT+8}, v{OUT+10}
        v_permlane16_swap_b32 v{OUT+9}, v{OUT+11}
        v_and_b32 v20, 15, v1
        v_lshlrev_b32 v20, 4, v20
        v_lshrrev_b32 v21, 4, v1
        v_mul_u32_u24 v22, 20480, v21
        v_add_u32 v20, v20, v22
        v_cmp_lt_u32 vcc, 31, v1
        v_mov_b32 v21, {OOB}
        v_cndmask_b32 v20, v20, v21, vcc
        buffer_store_dwordx4 {vr(OUT+8,4)}, v20, s[4:7], s52 offen offset:1024{self.st}
        """); vm.issue("O")
    def extraB(self, ks):
        F = []
        for _ in range(self.b_extra_rate):
            if ks >= self.b_extra_from and self.fifo: F.append(self.fifo.pop(0))
        return F
    b_extra_rate = 0; b_extra_from = 99

    def run(self, F):
        for f in F:
            if callable(f): f()
            elif f: self.a(f)
    def drain(self):
        self.run(self.fifo); self.fifo = []

    def signal(self, region, s_pair, s_idx):
        a = self.a
        a(f"""
        s_lshl_b32 s26, s{s_pair}, 7
        s_lshl_b32 s27, s{s_idx}, 2
        s_add_u32 s26, s26, s27
        s_add_u32 s26, s26, {FLG + region*8192}
        v_mov_b32 v20, 0
        v_mov_b32 v21, 1
        """)
        self.vm.wait_all()
        a(f"""
        s_mov_b64 exec, 1
        buffer_store_dword v21, v20, s[4:7], s26 offen sc0 sc1
        s_mov_b64 exec, -1
        """); self.vm.issue("F")
    def poll(self, region, s_pair):
        a = self.a
        lp = a.label("POLL"); ok = a.label("POK")
        a(f"""
        s_lshl_b32 s26, s{s_pair}, 7
        s_add_u32 s26, s26, {FLG + region*8192}
        v_and_b32 v20, 15, v1
        v_lshlrev_b32 v20, 2, v20
        s_mov_b32 s27, 400000
        {lp}:
        buffer_load_dword v21, v20, s[4:7], s26 offen sc1
        s_waitcnt vmcnt(0)
        v_cmp_ne_u32 vcc, 0, v21
        s_cmp_eq_u64 vcc, -1
        s_cbranch_scc1 {ok}
        s_sleep 1
        s_sub_u32 s27, s27, 1
        s_cmp_lg_u32 s27, 0
        s_cbranch_scc1 {lp}
        {ok}:
        """)
        self.vm.issue("P"); self.vm.done = len(self.vm.ops)

    def preread(self, slot0, nk):
        for ks in range(nk):
            base = ((slot0 + ks // 4) % 8) * SLOT + (ks % 4) * 5120
            for t in range(5):
                self.a(self.ds_frag(ar(20*ks+4*t, 4), base + 1024*t, "PRE"))
    def gemm80(self, order, npre, sA, slot0, events, ACC, PA=12, LA=2, dma_every=2, dma_from=0):
        a, vm, lg = self.a, self.vm, self.lg
        VA, NA = 100, 20
        VB, NB = 180, LA + 1
        N = len(order)
        lds_idx = {}
        for ks in order:
            if ks >= npre: lds_idx[ks] = len(lds_idx)
        def aload(pos):
            def f():
                ks = order[pos]
                a(f"s_add_u32 s56, s{sA}, {ks*1024}")
                a(f"buffer_load_dwordx4 {vr(VA+4*(pos%NA),4)}, v2, s[4:7], s56 offen{self.ld}"); vm.issue(("A", pos))
            return f
        def bfrag(ks, t):
            return ar(20*ks+4*t, 4) if ks < npre else vr(VB+20*(lds_idx[ks]%NB)+4*t, 4)
        def reads(pos):
            if pos >= N: return []
            F = list(events.get(pos, []))
            ks = order[pos]
            if ks >= npre:
                base = ((slot0 + ks // 4) % 8) * SLOT + (ks % 4) * 5120
                F += [(lambda t=t: a(self.ds_frag(bfrag(ks, t), base + 1024*t, ("B", ks)))) for t in range(5)]
            return F
        for pos in range(min(PA, N)): aload(pos)()
        a.stamp()
        for pos in range(LA): self.run(reads(pos))
        if npre: lg.wait("PRE")
        for pos in range(N):
            ks = order[pos]
            if ks >= npre: lg.wait(("B", ks))
            vm.wait(("A", pos))
            M = []
            for t in range(5):
                d = vr(ACC+4*t, 4)
                M.append(f"{M16} {d}, {bfrag(ks,t)}, {vr(VA+4*(pos%NA),4)}, {'0' if pos == 0 else d}")
            F = []
            if pos + PA < N: F.append(aload(pos + PA))
            elif self.fifo: F.append(self.fifo.pop(0))
            F += reads(pos + LA)
            if pos >= dma_from and pos % dma_every == 0 and self.fifo: F.append(self.fifo.pop(0))
            self.weave(M, F, lead=1)

    def row_offsets(self):
        a = self.a
        a(f"""
        s_lshl_b32 s54, s18, 2
        s_add_u32 s54, s54, s3                 ; rt
        s_lshr_b32 s57, s54, 1
        s_and_b32 s26, s54, 63
        s_lshl_b32 s26, s26, 5
        s_lshr_b32 s27, s54, 6
        s_add_u32 s26, s26, s27
        s_mul_i32 s53, s26, 1280
        s_mul_i32 s26, s19, 160
        s_add_u32 s53, s53, s26
        v_and_b32 v26, 15, v1
        v_lshrrev_b32 v27, 4, v1
        v_mul_u32_u24 v24, 2560, v26
        v_lshl_add_u32 v25, v27, 3, v24
        v_lshl_add_u32 v24, v27, 4, v24
        v_lshlrev_b32 v28, 5, v27              ; g*32
        v_lshlrev_b32 v29, 4, v27              ; g*16
        """)
    def load_gate(self, col0, G):
        a, vm = self.a, self.vm
        a(f"s_mul_i32 s26, s19, 320\ns_add_u32 s26, s26, {MODF + col0*4}")
        for pp in range(2):
            a(f"buffer_load_dwordx4 {vr(G+8*pp,4)}, v28, s[4:7], s26 offen offset:{128*pp}"); vm.issue("G")
            a(f"buffer_load_dwordx4 {vr(G+8*pp+4,4)}, v28, s[4:7], s26 offen offset:{128*pp+16}"); vm.issue("G")
        a(f"buffer_load_dwordx4 {vr(G+16,4)}, v29, s[4:7], s26 offen offset:256"); vm.issue("G")
    def unpack_res(self, X, U):
        for d in range(10):
            self.a(f"v_lshlrev_b32 v{U+2*d}, 16, v{X+d}")
            self.a(f"v_and_b32 v{U+2*d+1}, 0xffff0000, v{X+d}")
    def residual(self, ACC, G, X, U):
        a = self.a
        for e in range(0, 20, 2): a(f"v_pk_fma_f32 {vr(U+e,2)}, {vr(ACC+e,2)}, {vr(G+e,2)}, {vr(U+e,2)}")
        for d in range(10): a(f"v_cvt_pk_bf16_f32 v{X+d}, v{U+2*d}, v{U+2*d+1}")

    sWC, sWD, sWE = 58, 59, 60
    def setup_streams(self):
        self.a(f"""
        s_mul_i32 s{self.sWC}, s19, 102400
        s_add_u32 s{self.sWC}, s{self.sWC}, {WOP}
        s_mul_i32 s{self.sWD}, s17, {WGJ}
        s_add_u32 s{self.sWD}, s{self.sWD}, {WGP}
        s_mul_i32 s{self.sWE}, s19, 245760
        s_add_u32 s{self.sWE}, s{self.sWE}, {WDP}
        """)
    def stC(self, s): return self.stage_ops(self.sWC, 3 + s, ("W", "C", s))
    def stD(self, s): return self.stage_ops(self.sWD, s % 8, ("W", "D", s))
    def stE(self, s): return self.stage_ops(self.sWE, (5 + s) % 8, ("W", "E", s))

    def phaseC(self):
        a, vm, lg = self.a, self.vm, self.lg
        ACC, G, X, U = 32, 52, 240, 72
        sA = 46
        a(f"s_lshr_b32 s61, s49, 1")
        self.signal(0, 61, S_J)
        a("s_barrier")
        a.stamp()
        a(f"""
        s_mul_i32 s{sA}, s54, 20480
        s_add_u32 s55, s{sA}, {X1P}
        s_add_u32 s{sA}, s{sA}, {OP}
        """)
        a(f"buffer_load_dwordx4 {vr(X,4)}, v24, s[8:11], s53 offen"); vm.issue("G")
        a(f"buffer_load_dwordx4 {vr(X+4,4)}, v24, s[8:11], s53 offen offset:64"); vm.issue("G")
        a(f"buffer_load_dwordx2 {vr(X+8,2)}, v25, s[8:11], s53 offen offset:128"); vm.issue("G")
        self.load_gate(1280, G)
        F = self.stD(0) + self.stD(1) + self.stD(2)
        for ks in range(12):
            base = (3 + ks // 4) * SLOT + (ks % 4) * 5120
            for t in range(5): a(self.ds_frag(ar(20*ks+4*t, 4), base + 1024*t, "PRE"))
            self.run(F[:2]); F = F[2:]
        self.run(F)
        vm.wait("G")
        self.unpack_res(X, U)
        lg.wait("PRE")
        a("s_barrier")
        self.poll(0, 57)
        a.stamp()
        self.fifo = self.stD(3) + self.stD(4) + self.stD(5)
        order = [0, 1, 2, 12, 3, 13, 4, 14, 5, 15, 6, 16, 7, 17, 8, 18, 9, 19, 10, 11]
        self.gemm80(order, 12, sA, 3, {}, ACC, PA=12, dma_from=8, dma_every=1)
        a.stamp()
        self.residual(ACC, G, X, U)
        a(f"""
        s_mul_i32 s26, s19, 2560
        s_add_u32 s55, s55, s26
        buffer_store_dwordx4 {vr(X,4)}, v2, s[4:7], s55 offen{self.st}
        buffer_store_dwordx4 {vr(X+4,4)}, v2, s[4:7], s55 offen offset:1024{self.st}
        v_mov_b32 v{U}, v{X+8}
        v_mov_b32 v{U+1}, v{X+9}
        v_mov_b32 v{U+2}, v{X+8}
        v_mov_b32 v{U+3}, v{X+9}
        v_lshrrev_b32 v20, 5, v1
        v_lshlrev_b32 v20, 8, v20
        v_lshl_add_u32 v20, v26, 4, v20
        v_and_b32 v21, 16, v1
        v_cmp_eq_u32 vcc, 0, v21
        v_mov_b32 v21, {OOB}
        v_permlane16_swap_b32 v{U}, v{U+2}
        v_permlane16_swap_b32 v{U+1}, v{U+3}
        v_cndmask_b32 v20, v21, v20, vcc
        buffer_store_dwordx4 {vr(U,4)}, v20, s[4:7], s55 offen offset:2048{self.st}
        v_mov_b32 v22, 0x3f803f80
        """)
        for _ in range(3): vm.issue("X1")
        SU = U + 8
        for d in range(10):
            a(f"v_dot2_f32_bf16 v{SU}, v{X+d}, v22, {'0' if d == 0 else 'v%d' % SU}")
            a(f"v_dot2_f32_bf16 v{SU+1}, v{X+d}, v{X+d}, {'0' if d == 0 else 'v%d' % (SU+1)}")
        for sw in ("v_permlane16_swap_b32", "v_permlane32_swap_b32"):
            for h in range(2): a(f"v_mov_b32 v{SU+2+h}, v{SU+h}")
            for h in range(2): a(f"{sw} v{SU+h}, v{SU+2+h}")
            for h in range(2): a(f"v_add_f32 v{SU+h}, v{SU+h}, v{SU+2+h}")
        a(f"""
        s_lshl_b32 s26, s54, 3
        s_add_u32 s26, s26, s19
        s_lshl_b32 s26, s26, 7
        s_add_u32 s26, s26, {ST}
        v_lshlrev_b32 v20, 3, v1
        v_cndmask_b32 v20, v21, v20, s[{S_G0}:{S_G0+1}]
        buffer_store_dwordx2 {vr(SU,2)}, v20, s[4:7], s26 offen{self.st}
        """); vm.issue("X1")
        assert not self.fifo

    def phaseE(self):
        a, vm, lg = self.a, self.vm, self.lg
        ACC, G, X, U = 32, 52, 240, 72
        sA = 46
        self.signal(2, 61, S_J)
        a("s_barrier")
        a.stamp()
        a(f"""
        s_mul_i32 s{sA}, s54, 49152
        s_add_u32 s{sA}, s{sA}, {ACTP}
        """)
        self.load_gate(3200, G)
        F = self.stE(5) + self.stE(6) + self.stE(7)
        for ks in range(12):
            base = ((5 + ks // 4) % 8) * SLOT + (ks % 4) * 5120
            for t in range(5): a(self.ds_frag(ar(20*ks+4*t, 4), base + 1024*t, "PRE"))
            self.run(F[:2]); F = F[2:]
        self.run(F)
        lg.wait("PRE")
        a("s_barrier")
        self.run(self.stE(8))
        self.unpack_res(X, U)
        self.poll(2, 57)
        a.stamp()
        self.fifo = self.stE(9) + self.stE(10)
        order = [0, 1]
        l = 12; r = 2
        while l < 48:
            order += [l, l+1, l+2]; l += 3
            if r < 12: order.append(r); r += 1
        assert sorted(order) == list(range(48))
        ev = {}
        ev[order.index(20)] = ["s_barrier", lambda: self.fifo.extend(self.stE(11))]
        ev[order.index(36)] = [lambda: vm.wait(("W", "E", 10)), "s_barrier"]
        ev[order.index(44)] = [lambda: vm.wait(("W", "E", 11)), "s_barrier"]
        self.gemm80(order, 12, sA, 5, ev, ACC, PA=12, dma_from=0, dma_every=2)
        a.stamp()
        self.residual(ACC, G, X, U)
        a(f"""
        buffer_store_dwordx4 {vr(X,4)}, v24, s[12:15], s53 offen
        buffer_store_dwordx4 {vr(X+4,4)}, v24, s[12:15], s53 offen offset:64
        buffer_store_dwordx2 {vr(X+8,2)}, v25, s[12:15], s53 offen offset:128
        """)
        assert not self.fifo

    def phaseD(self, LA=2, PA=7):
        a, vm, lg = self.a, self.vm, self.lg
        VA1, VS, VO1 = 8, 9, 10
        AA = 0
        NB = LA + 1
        AB = 160
        ACC = 32
        EXT = 12
        RC = 128
        STT = 96
        sA, sO = 46, 48
        a(f"""
        s_and_b32 s62, s54, 1
        s_lshl_b32 s62, s62, 3
        s_add_u32 s62, s62, s19
        """)
        self.signal(1, 57, 62)
        a("s_barrier")
        a.stamp()
        self.run(self.stD(6) + self.stD(7))
        a(f"""
        s_mul_i32 s{sA}, s49, 20480
        s_add_u32 s{sA}, s{sA}, {X1P}
        s_mul_i32 s{sO}, s49, 49152
        s_mul_i32 s26, s17, 3072
        s_add_u32 s{sO}, s{sO}, s26
        s_add_u32 s{sO}, s{sO}, {ACTP}
        s_lshl_b32 s47, s49, 10
        s_add_u32 s47, s47, {ST}
        v_add_u32 v{VA1}, 20480, v2
        v_add_u32 v{VO1}, 49152, v2
        v_lshlrev_b32 v{VS}, 8, v27
        v_lshl_add_u32 v{VS}, v26, 3, v{VS}
        v_mov_b32 v{EXT+2}, 0
        v_mov_b32 v{EXT+3}, 0
        v_mov_b32 v{EXT+6}, 0
        v_mov_b32 v{EXT+7}, 0
        """)
        N = 63
        def reads(n):
            if n >= N: return []
            base = ((n // 5) % 8) * SLOT + (n % 5) * 4096
            return [(lambda m=m: a(self.ds_frag(ar(AB+16*(n%NB)+4*m,4), base + 1024*m, ("B", n)))) for m in range(4)]
        for n in range(LA): self.run(reads(n))
        self.poll(1, 61)
        a.stamp()
        def aload(k, rt):
            def f():
                a(f"buffer_load_dwordx4 {ar(AA+8*k+4*rt,4)}, v{VA1 if rt else 2}, s[4:7], s{sA} offen offset:{1024*(k%4)}{self.ld}"); vm.issue(("A", k))
                if k % 4 == 3 and rt == 1: a(f"s_add_u32 s{sA}, s{sA}, 4096")
            return f
        for k in range(PA):
            aload(k, 0)(); aload(k, 1)()
        for rt in range(2):
            for e in range(2):
                a(f"buffer_load_dwordx2 {vr(STT+4*rt+2*e,2)}, v{VS}, s[4:7], s47 offen offset:{1024*rt+128*e}{self.ld}"); vm.issue("ST")
        def stats():
            F = [lambda: vm.wait("ST")]
            S = [STT, STT + 4]
            def both(fmt):
                for rt in range(2): F.append(fmt.format(s=S[rt], q=S[rt]+1, t=S[rt]+2, u=S[rt]+3, e=EXT+4*rt, e1=EXT+4*rt+1, r=RC+rt, d=RC+2+rt))
            both("v_add_f32 v{s}, v{s}, v{t}"); both("v_add_f32 v{q}, v{q}, v{u}")
            for sw in ("v_permlane16_swap_b32", "v_permlane32_swap_b32"):
                both("v_mov_b32 v{t}, v{s}"); both("v_mov_b32 v{u}, v{q}")
                both(sw + " v{s}, v{t}"); both(sw + " v{q}, v{u}")
                both("v_add_f32 v{s}, v{s}, v{t}"); both("v_add_f32 v{q}, v{q}, v{u}")
            both("v_mul_f32 v{s}, %d, v{s}" % f2u(1.0/640)); both("v_mul_f32 v{q}, %d, v{q}" % f2u(1.0/640))
            both("v_fma_f32 v{q}, -v{s}, v{s}, v{q}"); both("v_max_f32 v{q}, 0, v{q}")
            both("v_cvt_pk_bf16_f32 v{q}, v{q}, v{q}"); both("v_and_b32 v{q}, 0xffff0000, v{q}")
            both("v_add_f32 v{q}, %d, v{q}" % f2u(1e-5))
            both("v_cvt_pk_bf16_f32 v{q}, v{q}, v{q}"); both("v_and_b32 v{q}, 0xffff0000, v{q}")
            both("v_sqrt_f32 v{q}, v{q}")
            both("v_cvt_pk_bf16_f32 v{e}, -v{s}, -v{s}")
            both("v_cvt_pk_bf16_f32 v{e1}, v{q}, v{q}")
            both("v_and_b32 v{q}, 0xffff0000, v{e1}")
            both("v_rcp_f32 v{r}, v{q}"); both("v_mul_f32 v{d}, v{q}, v{q}")
            both("v_mul_f32 v{r}, %d, v{r}" % f2u(-LOG2E))
            return F
        def epi(p):
            E = 104; P = 120
            F = []
            for rt in range(2):
                g = ACC + 32*(p & 1) + 16*rt; u = g + 8; e0 = E + 8*rt
                R = range(8)
                for r in R: F.append(f"v_mul_f32 v{e0+r}, v{g+r}, v{RC+rt}")
                for r in R:
                    F.append(f"v_exp_f32 v{e0+r}, v{e0+r}")
                    F.append(f"v_mul_f32 v{u+r}, v{g+r}, v{u+r}")
                for r in R: F.append(f"v_fma_f32 v{e0+r}, v{e0+r}, v{RC+2+rt}, v{RC+2+rt}")
                for r in R: F.append(f"v_rcp_f32 v{e0+r}, v{e0+r}")
                for r in R: F.append(f"v_mul_f32 v{u+r}, v{u+r}, v{e0+r}")
                for d in range(4): F.append(f"v_cvt_pk_bf16_f32 v{P+4*rt+d}, v{u+2*d}, v{u+2*d+1}")
                def st(rt=rt):
                    a(f"buffer_store_dwordx4 {vr(P+4*rt,4)}, v{VO1 if rt else 2}, s[4:7], s{sO} offen offset:{1024*p}{self.st}"); vm.issue("ACT")
                F.append(st)
            return F
        pend = []
        self.fifo = []
        nxt = {2: lambda: self.stD(8) + self.stD(9), 4: lambda: self.stD(10) + self.stD(11),
               6: lambda: self.stD(12) + self.stE(0), 8: lambda: self.stE(1) + self.stE(2), 10: lambda: self.stE(3) + self.stE(4), 12: lambda: []}
        for n in range(N):
            p, k = divmod(n, 21)
            lg.wait(("B", n))
            if p == 0 and k < 20: vm.wait(("A", k))
            if n == 8: pend = stats()
            M = []
            for m in range(4):
                for rt in range(2):
                    d = vr(ACC + 32*(p & 1) + 16*rt + 4*m, 4)
                    A = ar(AA+8*k+4*rt, 4) if k < 20 else vr(EXT+4*rt, 4)
                    M.append(f"{M16} {d}, {ar(AB+16*(n%NB)+4*m,4)}, {A}, {'0' if k == 0 else d}")
            F = []
            if n % 10 == 0 and 0 < n < 60:
                s = n // 5
                assert not self.fifo
                if s + 2 >= 6: F.append(lambda s=s: vm.wait(("W", "D", s + 2)))
                F.append("s_barrier")
                self.fifo = nxt[s]()
            V = []
            if p == 0 and k + PA < 20: V = [aload(k + PA, 0), aload(k + PA, 1)]
            elif self.fifo:
                V = [self.fifo.pop(0)]
                if p == 0 and self.fifo: V.append(self.fifo.pop(0))
            R = reads(n + LA)
            Q = []
            if (k >= 1 or p == 0) and pend:
                Q = pend[:6]; pend = pend[6:]
            mix = V[:1] + R[:2] + Q[:3] + V[1:] + R[2:] + Q[3:]
            self.weave(M, F + mix, lead=1)
            if k == 20:
                assert not pend
                pend = epi(p)
        a.stamp()
        assert not self.fifo
        self.run(pend)

def fused(a, kidx=2):
    k = K1(a, fused=True)
    k.kidx = kidx
    k.begin("k1_kernel")
    k.setup_streams()
    k.row_offsets()
    k.fifo = sum((k.stC(s) for s in range(5)), [])
    k.b_extra_from = 16; k.b_extra_rate = 5
    k.phaseB()
    k.phaseC(); k.phaseD(); k.phaseE()
    k.end()
```

```python
import sys
from gen import *
import k1
extra = int(sys.argv[2]) if len(sys.argv) > 2 and sys.argv[2].isdigit() else 0
a = Asm()
a.stamps = '-s' in sys.argv
k0a(a); k0b(a)
k1.fused(a)
if extra:
    a.begin("nop_kernel", 256, 256, lds=0)
    a("s_endpgm")
    a.end("nop_kernel", 16, 16)
    for _ in range(extra - 1): a.relaunch("nop_kernel", 256, 256, lds=0)
hdr = open("adaLN_cond__sliding_local_dilated__swiglu_ffn__prompt.s.ref").read().split("; Override launch")[0]
open(sys.argv[1] if len(sys.argv) > 1 else "k.s", "w").write(a.text(hdr))
```
